```python
import torch

def _softmax(x, axis=-1):
    return torch.softmax(x, dim=axis)
def _gelu(x):
    return torch.nn.functional.gelu(x, approximate="tanh")
def _silu(x):
    return torch.nn.functional.silu(x)
def _sigmoid(x):
    return torch.sigmoid(x)
def _layernorm(x, axis=-1, eps=1e-5):
    m = x.mean(dim=axis, keepdim=True)
    v = x.var(dim=axis, keepdim=True, unbiased=False)
    return (x - m) / torch.sqrt(v + eps)
def _scatter_add(tgt, idx, src, axis=0):
    return tgt.clone().index_add_(axis, idx, src)
def _segment_sum(src, seg, n):
    out = torch.zeros((n,) + src.shape[1:], dtype=src.dtype)
    return out.index_add_(0, seg, src)
def _pad(x, pw):
    flat = tuple(v for pair in reversed(pw) for v in pair)
    return torch.nn.functional.pad(x, flat)

kernel_name = 'gated_mix__sliding_local_dilated__sliding_local_dilated__prompt'

def setup_inputs():

    _w = (lambda a: (lambda t: t.to(torch.bfloat16) if t.is_floating_point() else t)(torch.as_tensor(a)))
    def _A_setup():
        B, S, D = 1, 2048, 512
        return {
            "x": _w((lambda *s: torch.randn(*s, dtype=torch.bfloat16) * 0.05)(B, S, D)),
            "wqkv": _w((lambda *s: torch.randn(*s, dtype=torch.bfloat16) * 0.8)(D, 3 * D)),
            "wo": _w((lambda *s: torch.randn(*s, dtype=torch.bfloat16) * 0.05)(D, D)),
        }
    _A_in = _A_setup()

    def _B_setup():
        B, S, D = 1, 2048, 512
        return {
            "x": _w((lambda *s: torch.randn(*s, dtype=torch.bfloat16) * 0.05)(B, S, D)),
            "wqkv": _w((lambda *s: torch.randn(*s, dtype=torch.bfloat16) * 0.8)(D, 3 * D)),
            "wo": _w((lambda *s: torch.randn(*s, dtype=torch.bfloat16) * 0.05)(D, D)),
        }
    _B_in = _B_setup()

    return {
        "A_x": _A_in["x"],
        "A_wqkv": _A_in["wqkv"],
        "A_wo": _A_in["wo"],
        "B_x": _B_in["x"],
        "B_wqkv": _B_in["wqkv"],
        "B_wo": _B_in["wo"],
        "gate_w": _w((lambda *s: torch.randn(*s, dtype=torch.bfloat16) * 0.05)(512) * 16.0),
    }

def reference(A_x, A_wqkv, A_wo, B_x, B_wqkv, B_wo, gate_w):
    def _A_ref(x, wqkv, wo):
        B, S, D = x.shape
        H = 32; Dh = D // H
        W, dil = 8, 2
        qkv = (lambda x, *d: x.permute(*d))((x @ wqkv).reshape(B, S, 3, H, Dh), 2, 0, 3, 1, 4)
        q, k, v = qkv[0], qkv[1], qkv[2]
        scale = Dh ** -0.5
        pos = torch.arange(S)
        off = torch.arange(W) * dil
        idx = pos[:, None] - off[None, :]
        mask = idx >= 0
        idx_c = torch.where(mask, idx, 0).reshape(-1)
        kg = k[:, :, idx_c, :].reshape(B, H, S, W, Dh)
        vg = v[:, :, idx_c, :].reshape(B, H, S, W, Dh)
        logits = torch.einsum("bhsd,bhswd->bhsw", q, kg) * scale
        logits = torch.where(mask[None, None, :, :], logits, -1e9)
        attn = _softmax(logits, axis=-1)
        o = torch.einsum("bhsw,bhswd->bhsd", attn, vg)
        return (lambda x, *d: x.permute(*d))(o, 0, 2, 1, 3).reshape(B, S, D) @ wo

    def _B_ref(x, wqkv, wo):
        B, S, D = x.shape
        H = 32; Dh = D // H
        W, dil = 8, 2
        qkv = (lambda x, *d: x.permute(*d))((x @ wqkv).reshape(B, S, 3, H, Dh), 2, 0, 3, 1, 4)
        q, k, v = qkv[0], qkv[1], qkv[2]
        scale = Dh ** -0.5
        pos = torch.arange(S)
        off = torch.arange(W) * dil
        idx = pos[:, None] - off[None, :]
        mask = idx >= 0
        idx_c = torch.where(mask, idx, 0).reshape(-1)
        kg = k[:, :, idx_c, :].reshape(B, H, S, W, Dh)
        vg = v[:, :, idx_c, :].reshape(B, H, S, W, Dh)
        logits = torch.einsum("bhsd,bhswd->bhsw", q, kg) * scale
        logits = torch.where(mask[None, None, :, :], logits, -1e9)
        attn = _softmax(logits, axis=-1)
        o = torch.einsum("bhsw,bhswd->bhsd", attn, vg)
        return (lambda x, *d: x.permute(*d))(o, 0, 2, 1, 3).reshape(B, S, D) @ wo

    x = A_x
    g = _sigmoid((x * gate_w).sum(-1, keepdims=True))
    a = _A_ref(x, A_wqkv, A_wo)
    b = _B_ref(x, B_wqkv, B_wo)
    return g * a + (1 - g) * b
```

```python
NAME = "gated_mix__sliding_local_dilated__sliding_local_dilated__prompt"

class Asm:
    def __init__(self):
        self.lines = []
        self.nlab = 0
    def __call__(self, s=""):
        for l in s.strip("\n").split("\n"):
            l = l.strip()
            if l.endswith(":") or l.startswith("."):
                self.lines.append(l)
            else:
                self.lines.append("    " + l)
    def label(self, base="L"):
        self.nlab += 1
        return f"{base}_{self.nlab}"
    def text(self):
        return "\n".join(self.lines) + "\n"

def vr(a, n=1):
    return f"v{a}" if n == 1 else f"v[{a}:{a+n-1}]"
def ar(a, n=1):
    return f"a{a}" if n == 1 else f"a[{a}:{a+n-1}]"
def sr(a, n=1):
    return f"s{a}" if n == 1 else f"s[{a}:{a+n-1}]"

HEADER = """; Kernarg layout for this problem (80 bytes, ptrs only, base s[0:1]):
"""

def kernel_open(name):
    return f""".globl {name}
.p2align 8
.type {name},@function
{name}:
"""

def descriptor(name, vgpr, sgpr=102, accum=None):
    if accum is None:
        accum = (vgpr + 3) // 4 * 4
    return f""".amdhsa_kernel {name}
  .amdhsa_next_free_vgpr {vgpr}
  .amdhsa_next_free_sgpr {sgpr}
  .amdhsa_accum_offset {accum}
  .amdhsa_group_segment_fixed_size 0
  .amdhsa_kernarg_size 80
  .amdhsa_user_sgpr_count 2
  .amdhsa_user_sgpr_kernarg_segment_ptr 1
  .amdhsa_system_sgpr_workgroup_id_x 1
  .amdhsa_float_denorm_mode_32 3
.end_amdhsa_kernel
"""
```

```python
import sys
from asmlib import *

STAMPS = "--stamps" in sys.argv
OUT = [a for a in sys.argv[1:] if not a.startswith("--")][0]
STAMP_OFF = 128 << 20
G_OFF = 8 << 20
SLOT = 43008
XB = 18432
NEG = 0xF149F2CA
CSC = 0x3EB8AA3B

class VM:
    def __init__(self, a): self.a = a; self.ops = []
    def op(self, tag): self.ops.append(tag)
    def wait(self, tag):
        idx = max(i for i, t in enumerate(self.ops) if t == tag)
        n = len(self.ops) - 1 - idx
        assert n < 64
        self.a(f"s_waitcnt vmcnt({n})")

def stamp(a, i):
    if STAMPS:
        a(f"s_memtime s[{60+2*i}:{61+2*i}]")

def store_stamps(a, n, wsbase, extra_off=0):
    if not STAMPS: return
    a("s_memrealtime s[78:79]")
    a("s_waitcnt lgkmcnt(0)")
    a(f"s_lshl_b32 s58, s2, 7")
    a(f"s_add_u32 s58, s58, {STAMP_OFF + extra_off}")
    a(f"s_add_u32 s56, s{wsbase}, s58")
    a(f"s_addc_u32 s57, s{wsbase+1}, 0")
    a("v_mov_b32 v2, 0")
    for i in range(10):
        a(f"v_mov_b32 v4, s{60+2*i}")
        a(f"v_mov_b32 v5, s{61+2*i}")
        a(f"global_store_dwordx2 v2, v[4:5], s[56:57] offset:{8*i}")
    a("s_waitcnt vmcnt(0)")

def gen_k1(a, name):
    a(kernel_open(name))
    a("s_cmp_ge_u32 s2, 256")
    a("s_cbranch_scc1 K1_END")
    if STAMPS:
        a("s_memrealtime s[76:77]")
    stamp(a, 0)
    a("""
    s_load_dwordx4 s[4:7], s[0:1], 0
    s_load_dwordx2 s[8:9], s[0:1], 32
    s_load_dwordx2 s[10:11], s[0:1], 48
    s_load_dwordx2 s[12:13], s[0:1], 72
    v_lshrrev_b32 v1, 6, v0
    v_and_b32 v0, 63, v0
    s_and_b32 s14, s2, 7
    s_lshr_b32 s15, s2, 3
    v_readfirstlane_b32 s3, v1
    s_and_b32 s16, s14, 1
    s_lshl_b32 s16, s16, 3
    s_and_b32 s17, s15, 7
    s_add_u32 s16, s16, s17          ; s16 = rt
    s_lshr_b32 s17, s14, 1
    s_lshl_b32 s17, s17, 2
    s_lshr_b32 s18, s15, 3
    s_add_u32 s17, s17, s18          ; s17 = cg
    s_lshr_b32 s18, s17, 3           ; s18 = branch
    s_and_b32 s19, s17, 7            ; s19 = hg
    s_cmp_ge_u32 s3, 4
    s_cbranch_scc0 K1_CONS
    """)
    a("""
    s_sub_u32 s3, s3, 4              ; lw
    v_lshrrev_b32 v1, 3, v0          ; r
    v_and_b32 v2, 7, v0              ; c
    s_and_b32 s33, s3, 1
    s_lshl_b32 s34, s33, 2
    v_lshrrev_b32 v3, 1, v1
    v_add_u32 v3, s34, v3            ; f = 4*(lw&1) + (r>>1)
    v_xor_b32 v3, v2, v3
    v_lshlrev_b32 v3, 4, v3          ; x chunk*16
    s_lshl_b32 s34, s16, 7
    s_lshl_b32 s35, s3, 3
    s_add_u32 s34, s34, s35
    s_sub_u32 s34, s34, 16
    v_add_u32 v4, s34, v1            ; row
    v_max_i32 v5, 0, v4
    v_lshl_add_u32 v16, v5, 10, v3
    v_lshl_add_u32 v5, v4, 10, v3
    v_add_u32 v17, 0x8000, v5
    v_add_u32 v18, 0x10000, v5
    v_add_u32 v19, 0x18000, v5
    v_add_u32 v20, 0x20000, v5
    v_bfe_u32 v3, v1, 1, 1
    s_lshl_b32 s34, s33, 1
    v_or_b32 v3, s34, v3             ; f
    v_lshlrev_b32 v3, 1, v3
    v_xor_b32 v3, v2, v3
    v_lshlrev_b32 v3, 4, v3          ; W chunk*16
    s_lshl_b32 s34, s3, 3
    v_add_u32 v4, s34, v1
    v_mul_u32_u24 v4, 3072, v4
    s_lshl_b32 s34, s19, 7
    v_add3_u32 v4, v4, v3, s34
    """)
    for i in range(6):
        a(f"v_add_u32 v{21+i}, {(i>>1)*1024 + (i&1)*32*3072}, v4")
    a("""
    s_lshl_b32 s34, s16, 7
    s_lshl_b32 s35, s17, 3
    s_add_u32 s34, s34, s35
    s_lshl_b32 s35, s3, 1
    s_add_u32 s34, s34, s35
    v_lshrrev_b32 v3, 5, v0
    v_add_u32 v3, s34, v3            ; token
    v_and_b32 v4, 31, v0
    v_lshlrev_b32 v28, 5, v4         ; gate_w offset
    v_lshl_add_u32 v27, v3, 10, v28  ; x offset
    v_lshlrev_b32 v29, 2, v3
    v_add_u32 v29, %d, v29           ; g store offset in ws
    s_lshl_b32 s36, s3, 10           ; lw*1024
    s_waitcnt lgkmcnt(0)
    s_mov_b32 s20, s4
    s_mov_b32 s21, s5
    s_mov_b32 s22, 0x200000
    s_mov_b32 s23, 0x20000
    s_cmp_eq_u32 s18, 0
    s_cselect_b32 s24, s6, s8
    s_cselect_b32 s25, s7, s9
    s_mov_b32 s26, 0x180000
    s_mov_b32 s27, 0x20000
    s_mov_b32 s28, s12
    s_mov_b32 s29, s13
    s_mov_b32 s30, 0x10000000
    s_mov_b32 s31, 0x20000
    s_mov_b32 s40, s10
    s_mov_b32 s41, s11
    s_mov_b32 s42, 1024
    s_mov_b32 s43, 0x20000
    s_cmp_ge_u32 s3, 2
    s_cbranch_scc1 K1_LOAD4
    """ % G_OFF)
    for nx, lab in ((5, "K1_LOAD5"), (4, "K1_LOAD4")):
        a(f"{lab}:")
        vm = VM(a)
        def issue(s):
            slot = (s % 3) * SLOT
            a(f"s_mov_b32 s37, {s*128}")
            a(f"s_mov_b32 s38, {s*64*3072}")
            order = []
            for i in range(6):
                order.append(("w", i))
                if i < nx: order.append(("x", i))
            for kind, i in order:
                if kind == "x":
                    a(f"s_add_u32 m0, s36, {slot + 4096*i}")
                    a("s_nop 0")
                    a(f"buffer_load_dwordx4 v{16+i}, s[20:23], s37 offen lds")
                else:
                    a(f"s_add_u32 m0, s36, {slot + XB + 4096*i}")
                    a("s_nop 0")
                    a(f"buffer_load_dwordx4 v{21+i}, s[24:27], s38 offen lds")
                vm.op(f"st{s}")
        for s in range(3): issue(s)
        a("buffer_load_dwordx4 v[32:35], v27, s[20:23], 0 offen"); vm.op("g")
        a("buffer_load_dwordx4 v[36:39], v27, s[20:23], 0 offen offset:16"); vm.op("g")
        a("buffer_load_dwordx4 v[40:43], v28, s[40:43], 0 offen"); vm.op("g")
        a("buffer_load_dwordx4 v[44:47], v28, s[40:43], 0 offen offset:16"); vm.op("g")
        vm.wait("st0")
        a("s_barrier")
        for s in range(7):
            vm.wait(f"st{s+1}")
            a("s_barrier")
            if s + 3 <= 7: issue(s + 3)
            if s == 1:
                vm.wait("g")
                a("v_mov_b32 v60, 0")
                a("v_mov_b32 v61, 0")
                for j in range(8):
                    a(f"""
                    v_lshlrev_b32 v50, 16, v{32+j}
                    v_and_b32 v51, 0xffff0000, v{32+j}
                    v_lshlrev_b32 v52, 16, v{40+j}
                    v_and_b32 v53, 0xffff0000, v{40+j}
                    v_mul_f32 v50, v50, v52
                    v_mul_f32 v51, v51, v53
                    v_cvt_pk_bf16_f32 v50, v50, v51
                    v_lshlrev_b32 v52, 16, v50
                    v_and_b32 v53, 0xffff0000, v50
                    v_add_f32 v60, v60, v52
                    v_add_f32 v61, v61, v53
                    """)
                a("v_add_f32 v60, v60, v61")
                for rot in (8, 4, 2, 1):
                    a("s_nop 1")
                    a(f"v_add_f32_dpp v60, v60, v60 row_ror:{rot} row_mask:0xf bank_mask:0xf")
                a("""
                v_mov_b32 v61, v60
                s_nop 1
                v_permlane16_swap_b32 v60, v61
                s_nop 1
                v_add_f32 v60, v60, v61
                v_cvt_pk_bf16_f32 v60, v60, v60
                v_lshlrev_b32 v60, 16, v60
                v_mul_f32 v60, 0xbfb8aa3b, v60
                v_exp_f32 v60, v60
                s_nop 0
                v_add_f32 v60, 1.0, v60
                v_rcp_f32 v60, v60
                s_nop 0
                v_cvt_pk_bf16_f32 v60, v60, v60
                v_lshlrev_b32 v60, 16, v60
                s_mov_b32 exec_lo, 1
                s_mov_b32 exec_hi, 1
                buffer_store_dword v60, v29, s[28:31], 0 offen
                s_mov_b64 exec, -1
                """)
                vm.op("gs")
        a("s_waitcnt vmcnt(0)")
        a("s_endpgm")
    a("K1_CONS:")
    QA, KA, VA = 16, 48, 84
    FA = (120, 168)
    CCUR, CPREV, CPF, PM, ONES = 216, 220, 224, 228, 232
    a("""
    v_lshrrev_b32 v1, 4, v0          ; g
    v_and_b32 v2, 15, v0             ; n
    v_lshrrev_b32 v3, 1, v2
    v_xor_b32 v3, v1, v3
    v_lshlrev_b32 v3, 4, v3
    v_lshl_add_u32 v4, v2, 7, v3     ; xaddr sub0 slot0
    v_xor_b32 v5, 64, v4             ; xaddr sub1 slot0
    v_add_u32 v6, %d, v4
    v_add_u32 v7, %d, v5
    v_add_u32 v8, %d, v4
    v_add_u32 v9, %d, v5
    v_lshrrev_b32 v3, 2, v2          ; r
    v_lshl_add_u32 v10, v1, 3, v3    ; 8g + r
    v_lshlrev_b32 v10, 7, v10
    v_lshrrev_b32 v3, 1, v3
    v_and_b32 v14, 1, v1
    v_lshl_or_b32 v3, v14, 1, v3     ; f
    v_xor_b32 v3, s3, v3
    v_lshl_add_u32 v10, v3, 5, v10
    v_and_b32 v3, 3, v2
    v_lshl_add_u32 v10, v3, 3, v10
    v_add_u32 v10, %d, v10           ; waddr slot0
    v_add_u32 v11, %d, v10
    v_add_u32 v12, %d, v10
    """ % (SLOT, SLOT, 2*SLOT, 2*SLOT, XB, SLOT, 2*SLOT))
    a("""
    s_lshl_b32 s33, s19, 2
    s_add_u32 s33, s33, s3           ; h
    s_lshl_b32 s34, s16, 18          ; 8rt*32768
    s_lshl_b32 s35, s18, 14
    s_add_u32 s34, s34, s35
    s_lshr_b32 s35, s33, 1
    s_lshl_b32 s35, s35, 10
    s_add_u32 s34, s34, s35
    s_and_b32 s35, s33, 1
    s_lshl_b32 s35, s35, 9
    s_add_u32 s34, s34, s35
    v_and_b32 v3, 1, v1
    v_lshlrev_b32 v13, 15, v3
    v_lshrrev_b32 v3, 1, v1
    v_lshl_add_u32 v13, v3, 8, v13
    v_lshl_add_u32 v13, v2, 4, v13
    v_add_u32 v13, s34, v13
    """)
    a(f"s_mov_b32 s35, {NEG}")
    a("v_lshlrev_b32 v3, 2, v1")
    a("v_sub_u32 v3, v2, v3             ; n - 4g")
    for i in range(4):
        a(f"""
        v_subrev_u32 v14, {i}, v3        ; d = n - 4g - i
        v_and_b32 v15, 1, v14
        v_cmp_eq_u32 s[44:45], 0, v15    ; even
        v_cmp_le_i32 s[46:47], 0, v14    ; d >= 0
        s_nop 1
        s_and_b64 s[48:49], s[44:45], s[46:47]
        s_andn2_b64 s[50:51], s[44:45], s[46:47]
        v_mov_b32 v15, s35
        v_cndmask_b32 v{CCUR+i}, v15, 0, s[48:49]
        v_cndmask_b32 v{CPREV+i}, v15, 0, s[50:51]
        v_mov_b32 v14, {"0xffff" if i % 2 == 0 else "0xffff0000"}
        v_cndmask_b32 v{236+i}, 0, v14, s[50:51]
        v_cndmask_b32 v{240+i}, 0, v14, s[48:49]
        """)
    a(f"""
    v_or_b32 v{PM}, v236, v237
    v_or_b32 v{PM+1}, v238, v239
    v_or_b32 v{PM+2}, v240, v241
    v_or_b32 v{PM+3}, v242, v243
    s_cmp_eq_u32 s16, 0
    s_cselect_b64 s[44:45], -1, 0
    v_mov_b32 v15, s35
    """)
    for i in range(4):
        a(f"v_cndmask_b32 v{CPF+i}, v{CPREV+i}, v15, s[44:45]")
        a(f"v_mov_b32 v{ONES+i}, 0x3f803f80")
    a("""
    s_waitcnt lgkmcnt(0)
    s_mov_b32 s28, s12
    s_mov_b32 s29, s13
    s_mov_b32 s30, 0x10000000
    s_mov_b32 s31, 0x20000
    """)
    def reads(s, sub, fs):
        slot = s % 3
        base = FA[fs]
        r = []
        for sec in range(3):
            for half in range(2):
                r.append(f"ds_read_b64_tr_b16 {vr(base+36+4*sec+2*half, 2)}, v{10+slot} offset:{sec*8192 + sub*4096 + half*512}")
        for T in range(9):
            r.append(f"ds_read_b128 {vr(base+4*T, 4)}, v{4+2*slot+sub} offset:{T*2048}")
        return r
    def mfmas(fs, first):
        base = FA[fs]
        m = []
        X = lambda T: vr(base + 4*T, 4)
        W = lambda sec: vr(base + 36 + 4*sec, 4)
        for T in range(9):
            d = vr(KA + 4*T, 4); m.append(f"v_mfma_f32_16x16x32_bf16 {d}, {W(1)}, {X(T)}, {0 if first else d}")
            d = vr(VA + 4*T, 4); m.append(f"v_mfma_f32_16x16x32_bf16 {d}, {X(T)}, {W(2)}, {0 if first else d}")
            if T >= 1:
                d = vr(QA + 4*(T-1), 4); m.append(f"v_mfma_f32_16x16x32_bf16 {d}, {W(0)}, {X(T)}, {0 if first else d}")
        return m
    def interleave(m, r):
        for i, x in enumerate(m):
            a(x)
            if i < len(r): a(r[i])
    a("s_barrier")
    stamp(a, 1)
    for x in reads(0, 0, 0): a(x)
    a("s_waitcnt lgkmcnt(0)")
    for s in range(8):
        interleave(mfmas(0, s == 0), reads(s, 1, 1))
        a("s_waitcnt lgkmcnt(0)")
        if s < 7:
            a("s_barrier")
            interleave(mfmas(1, False), reads(s + 1, 0, 0))
            a("s_waitcnt lgkmcnt(0)")
        else:
            interleave(mfmas(1, False), [])
    stamp(a, 2)
    QP, KP, VP = 120, 136, 154
    L, M, TMP = 80, 96, 104
    a("s_nop 7")
    for T in range(9):
        a(f"v_cvt_pk_bf16_f32 v{KP+2*T}, v{KA+4*T}, v{KA+4*T+1}")
        a(f"v_cvt_pk_bf16_f32 v{KP+2*T+1}, v{KA+4*T+2}, v{KA+4*T+3}")
        a(f"v_cvt_pk_bf16_f32 v{VP+2*T}, v{VA+4*T}, v{VA+4*T+1}")
        a(f"v_cvt_pk_bf16_f32 v{VP+2*T+1}, v{VA+4*T+2}, v{VA+4*T+3}")
        if T >= 1:
            a(f"v_cvt_pk_bf16_f32 v{QP+2*(T-1)}, v{QA+4*(T-1)}, v{QA+4*(T-1)+1}")
            a(f"v_cvt_pk_bf16_f32 v{QP+2*(T-1)+1}, v{QA+4*(T-1)+2}, v{QA+4*(T-1)+3}")
    a("s_nop 1")
    SC = lambda T: 16 + 8*(T-1)
    for T in range(1, 9):
        q = vr(QP + 2*(T-1), 2)
        a(f"v_mfma_f32_16x16x16_bf16 {vr(SC(T),4)}, {vr(KP+2*T,2)}, {q}, {vr(CCUR,4)}")
        a(f"v_mfma_f32_16x16x16_bf16 {vr(SC(T)+4,4)}, {vr(KP+2*(T-1),2)}, {q}, {vr(CPF if T == 1 else CPREV,4)}")
    a("s_nop 7")
    for T in range(1, 9):
        s0 = SC(T); l = L + 2*(T-1)
        a(f"v_max3_f32 v{l}, v{s0}, v{s0+1}, v{s0+4}")
        a(f"v_max3_f32 v{l+1}, v{s0+2}, v{s0+3}, v{s0+6}")
        a(f"v_max_f32 v{l}, v{l}, v{s0+5}")
        a(f"v_max_f32 v{l+1}, v{l+1}, v{s0+7}")
        a(f"v_max_f32 v{M+T-1}, v{l}, v{l+1}")
    a(f"s_mov_b32 s35, {CSC}")
    B = [(M, M+1, M+2, M+3), (M+4, M+5, M+6, M+7)]
    a("s_nop 0")
    for (p, q, r, s) in B:
        a(f"v_permlane32_swap_b32 v{p}, v{q}")
        a(f"v_permlane32_swap_b32 v{r}, v{s}")
    a("s_nop 0")
    for (p, q, r, s) in B:
        a(f"v_max_f32 v{p}, v{p}, v{q}")
        a(f"v_max_f32 v{r}, v{r}, v{s}")
    a("s_nop 1")
    for (p, q, r, s) in B:
        a(f"v_permlane16_swap_b32 v{p}, v{r}")
    a("s_nop 1")
    for (p, q, r, s) in B:
        a(f"v_max_f32 v{p}, v{p}, v{r}")
    for (p, q, r, s) in B:
        a(f"v_mul_f32 v{p}, s35, v{p}")
    for (p, q, r, s) in B:
        a(f"v_mov_b32 v{r}, v{p}")
    a("s_nop 1")
    for (p, q, r, s) in B:
        a(f"v_permlane16_swap_b32 v{p}, v{r}")
    a("s_nop 1")
    for (p, q, r, s) in B:
        a(f"v_mov_b32 v{q}, v{p}")
        a(f"v_mov_b32 v{s}, v{r}")
    a("s_nop 1")
    for (p, q, r, s) in B:
        a(f"v_permlane32_swap_b32 v{p}, v{q}")
        a(f"v_permlane32_swap_b32 v{r}, v{s}")
    a("s_nop 1")
    for T in range(1, 9):
        l = L + 2*(T-1)
        a(f"v_fma_f32 v{l}, v{l}, s35, -v{M+T-1}")
        a(f"v_fma_f32 v{l+1}, v{l+1}, s35, -v{M+T-1}")
    for T in range(1, 9):
        l = L + 2*(T-1)
        a(f"v_exp_f32 v{l}, v{l}")
        a(f"v_exp_f32 v{l+1}, v{l+1}")
    a("s_nop 0")
    for T in range(1, 9):
        l = L + 2*(T-1)
        a(f"v_cvt_pk_bf16_f32 v{l}, v{l}, v{l}")
        a(f"v_cvt_pk_bf16_f32 v{l+1}, v{l+1}, v{l+1}")
    PR = lambda T: 16 + 4*(T-1)
    for T in range(1, 9):
        l = L + 2*(T-1); p = PR(T)
        a(f"v_and_b32 v{p}, v{l}, v{PM}")
        a(f"v_and_b32 v{p+1}, v{l+1}, v{PM+1}")
        a(f"v_and_b32 v{p+2}, v{l}, v{PM+2}")
        a(f"v_and_b32 v{p+3}, v{l+1}, v{PM+3}")
    a("s_nop 1")
    OO = lambda T: 48 + 4*(T-1)
    SUM = lambda T: 176 + 4*(T-1)
    for T in range(1, 9):
        a(f"v_mfma_f32_16x16x32_bf16 {vr(SUM(T),4)}, {vr(ONES,4)}, {vr(PR(T),4)}, 0")
        a(f"v_mfma_f32_16x16x32_bf16 {vr(OO(T),4)}, {vr(VP+2*(T-1),4)}, {vr(PR(T),4)}, 0")
    a("s_nop 7")
    for T in range(1, 9):
        a(f"v_rcp_f32 v{M+T-1}, v{SUM(T)}")
    a("s_nop 0")
    for T in range(1, 9):
        o = OO(T)
        for i in range(4):
            a(f"v_mul_f32 v{o+i}, v{o+i}, v{M+T-1}")
    for i in range(4):
        ob = 80 + 4*i
        o0, o1 = OO(2*i+1), OO(2*i+2)
        a(f"v_cvt_pk_bf16_f32 v{ob}, v{o0}, v{o0+1}")
        a(f"v_cvt_pk_bf16_f32 v{ob+1}, v{o0+2}, v{o0+3}")
        a(f"v_cvt_pk_bf16_f32 v{ob+2}, v{o1}, v{o1+1}")
        a(f"v_cvt_pk_bf16_f32 v{ob+3}, v{o1+2}, v{o1+3}")
    a("s_nop 1")
    for i in range(4):
        ob = 80 + 4*i
        a(f"v_permlane16_swap_b32 v{ob}, v{ob+2}")
        a(f"v_permlane16_swap_b32 v{ob+1}, v{ob+3}")
        a(f"s_mov_b32 s33, {65536*i}")
        a(f"buffer_store_dwordx4 {vr(ob,4)}, v13, s[28:31], s33 offen")
    stamp(a, 3)
    a("s_waitcnt vmcnt(0)")
    stamp(a, 4)
    if STAMPS:
        a("s_cmp_eq_u32 s3, 0")
        a("s_cbranch_scc0 K1_END")
        store_stamps(a, 5, 12)
    a("K1_END:")
    a("s_endpgm")

def gen_k2(a, name):
    a(kernel_open(name))
    a("s_cmp_ge_u32 s2, 256")
    a("s_cbranch_scc1 K2_END")
    if STAMPS:
        a("s_memrealtime s[76:77]")
    stamp(a, 0)
    XCH = 131072
    a("""
    s_load_dwordx2 s[4:5], s[0:1], 16
    s_load_dwordx2 s[6:7], s[0:1], 40
    s_load_dwordx2 s[8:9], s[0:1], 56
    s_load_dwordx2 s[12:13], s[0:1], 72
    v_lshrrev_b32 v1, 6, v0
    v_and_b32 v0, 63, v0
    s_and_b32 s14, s2, 7
    s_lshr_b32 s15, s2, 3
    v_readfirstlane_b32 s3, v1
    s_and_b32 s16, s15, 3
    s_lshl_b32 s14, s14, 2
    s_add_u32 s16, s16, s14          ; rt2
    s_lshr_b32 s17, s15, 2           ; ct
    s_lshr_b32 s18, s3, 2            ; b
    s_and_b32 s19, s3, 3             ; rq
    s_lshl_b32 s33, s16, 2
    s_add_u32 s33, s33, s19          ; t (16-token tile)
    ; wo DMA offsets
    v_lshrrev_b32 v1, 3, v0          ; r
    v_and_b32 v2, 7, v0              ; c
    v_bfe_u32 v3, v1, 1, 1
    v_lshlrev_b32 v3, 1, v3
    v_xor_b32 v3, v2, v3             ; chunk for even pieces
    v_xor_b32 v4, 4, v3              ; chunk for odd pieces
    s_lshl_b32 s34, s19, 17          ; rq*128 rows*1024
    s_lshl_b32 s35, s17, 7
    s_add_u32 s34, s34, s35
    v_lshl_add_u32 v1, v1, 10, s34
    v_lshl_add_u32 v16, v3, 4, v1    ; even
    v_lshl_add_u32 v17, v4, 4, v1
    v_add_u32 v17, 8192, v17         ; odd
    ; o offsets
    s_lshl_b32 s34, s33, 1
    s_add_u32 s34, s34, s18
    s_lshl_b32 s34, s34, 14
    v_lshl_add_u32 v18, v0, 4, s34
    ; lane decomposition
    v_lshrrev_b32 v1, 4, v0          ; g
    v_and_b32 v2, 15, v0             ; n
    s_lshl_b32 s34, s33, 4
    v_add_u32 v3, s34, v2            ; token
    v_lshlrev_b32 v19, 2, v3
    v_add_u32 v19, %d, v19           ; gate offset
    s_lshl_b32 s34, s17, 7
    s_lshl_b32 s35, s18, 6
    s_add_u32 s34, s34, s35
    v_lshl_add_u32 v20, v3, 10, s34
    v_and_b32 v3, 1, v1
    v_lshl_add_u32 v20, v3, 5, v20
    v_lshrrev_b32 v3, 1, v1
    v_lshl_add_u32 v20, v3, 4, v20   ; out offset
    ; tr-read addresses v8..v11 (j = 0..3)
    v_lshrrev_b32 v3, 2, v2          ; r
    v_lshl_add_u32 v4, v1, 3, v3
    v_lshlrev_b32 v4, 7, v4
    v_lshrrev_b32 v3, 1, v3
    v_and_b32 v5, 1, v1
    v_lshl_or_b32 v3, v5, 1, v3      ; f
    v_and_b32 v5, 3, v2
    v_lshl_add_u32 v4, v5, 3, v4
    s_lshl_b32 s34, s18, 16
    v_add_u32 v4, s34, v4
    """ % G_OFF)
    for j in range(4):
        a(f"v_xor_b32 v5, {j}, v3")
        a(f"v_lshl_add_u32 v{8+j}, v5, 5, v4")
    a(f"""
    s_lshl_b32 s34, s3, 11
    s_add_u32 s34, s34, {XCH}
    v_lshl_add_u32 v12, v0, 4, s34
    v_xor_b32 v13, 8192, v12
    s_lshl_b32 s36, s3, 14
    s_waitcnt lgkmcnt(0)
    s_cmp_eq_u32 s18, 0
    s_cselect_b32 s24, s4, s6
    s_cselect_b32 s25, s5, s7
    s_mov_b32 s26, 0x80000
    s_mov_b32 s27, 0x20000
    s_mov_b32 s28, s12
    s_mov_b32 s29, s13
    s_mov_b32 s30, 0x10000000
    s_mov_b32 s31, 0x20000
    s_mov_b32 s20, s8
    s_mov_b32 s21, s9
    s_mov_b32 s22, 0x200000
    s_mov_b32 s23, 0x20000
    """)
    vm = VM(a)
    for i in range(16):
        a(f"s_add_u32 m0, s36, {1024*i}")
        a(f"s_mov_b32 s37, {(i >> 1)*16384}")
        a(f"buffer_load_dwordx4 v{16+(i&1)}, s[24:27], s37 offen lds"); vm.op("wo")
    OF = 64
    for s in range(16):
        if s % 4 == 0: a(f"s_mov_b32 s37, {(s >> 2)*4096}")
        a(f"buffer_load_dwordx4 {vr(OF+4*s,4)}, v18, s[28:31], s37 offen offset:{(s&3)*1024}"); vm.op(f"o{s}")
    a("buffer_load_dword v21, v19, s[28:31], 0 offen"); vm.op("g")
    vm.wait("wo")
    a("s_barrier")
    stamp(a, 1)
    ACC = 24
    WF = (128, 144)
    def reads(s):
        r = []
        for j in range(4):
            for half in range(2):
                r.append(f"ds_read_b64_tr_b16 {vr(WF[s&1]+4*j+2*half,2)}, v{8+j} offset:{s*4096+half*512}")
        return r
    for x in reads(0): a(x)
    for s in range(16):
        r = reads(s + 1) if s < 15 else []
        for x in r: a(x)
        a(f"s_waitcnt lgkmcnt({len(r)})")
        vm.wait(f"o{s}")
        for j in range(4):
            d = vr(ACC + 4*j, 4)
            a(f"v_mfma_f32_16x16x32_bf16 {d}, {vr(WF[s&1]+4*j,4)}, {vr(OF+4*s,4)}, {0 if s == 0 else d}")
    stamp(a, 2)
    a("s_nop 7")
    a("s_cmp_eq_u32 s18, 0")
    a("s_cbranch_scc0 K2_B1")
    for b in range(2):
        if b == 1: a("K2_B1:")
        give = ACC + 8*(1-b); keep = ACC + 8*b
        a(f"ds_write_b128 v12, {vr(give,4)}")
        a(f"ds_write_b128 v12, {vr(give+4,4)} offset:1024")
        a("s_waitcnt lgkmcnt(0)")
        a("s_barrier")
        a(f"ds_read_b128 v[48:51], v13")
        a(f"ds_read_b128 v[52:55], v13 offset:1024")
        a("s_waitcnt vmcnt(0)")
        a("v_sub_f32 v22, 1.0, v21")
        a("v_cvt_pk_bf16_f32 v22, v22, v22")
        a("v_lshlrev_b32 v22, 16, v22")
        ck, cr = (21, 22) if b == 0 else (22, 21)
        for i in range(8):
            a(f"v_mul_f32 v{keep+i}, v{keep+i}, v{ck}")
        a("s_waitcnt lgkmcnt(0)")
        for i in range(8):
            a(f"v_fmac_f32 v{keep+i}, v{48+i}, v{cr}")
        for i in range(4):
            a(f"v_cvt_pk_bf16_f32 v{56+i}, v{keep+2*i}, v{keep+2*i+1}")
        a("s_nop 1")
        a("v_permlane16_swap_b32 v56, v58")
        a("v_permlane16_swap_b32 v57, v59")
        a("buffer_store_dwordx4 v[56:59], v20, s[20:23], 0 offen")
        if b == 0: a("s_branch K2_FIN")
    a("K2_FIN:")
    stamp(a, 3)
    a("s_waitcnt vmcnt(0)")
    stamp(a, 4)
    if STAMPS:
        a("s_cmp_eq_u32 s3, 0")
        a("s_cbranch_scc0 K2_END")
        store_stamps(a, 5, 12, 32768)
    a("K2_END:")
    a("s_endpgm")

a = Asm()
a.lines.append(HEADER.rstrip())
a.lines.append("; @launch kernel=gm_p1_kernel grid=(256,1,1) block=(512,1,1) lds=129024")
a.lines.append("; @launch kernel=gm_p2_kernel grid=(256,1,1) block=(512,1,1) lds=147456")
a('.amdgcn_target "amdgcn-amd-amdhsa--gfx950"')
a(".text")
gen_k1(a, "gm_p1_kernel")
gen_k2(a, "gm_p2_kernel")
a('.section .rodata,"a"')
a(".p2align 6")
a(descriptor("gm_p1_kernel", 256))
a(".p2align 6")
a(descriptor("gm_p2_kernel", 256))
open(OUT, "w").write(a.text())
```

```python
import sys
from asmlib import *

STAMPS = "--stamps" in sys.argv
def opt(name, default):
    for x in sys.argv:
        if x.startswith(f"--{name}="): return int(x.split("=")[1])
    return default
ROT = opt("rot", 0)
PRO = opt("pro", 0)
NOGATE = opt("nogate", 0)
def sopt(name, default):
    for x in sys.argv:
        if x.startswith(f"--{name}="): return x.split("=")[1]
    return default
SEQ = sopt("seq", "D0,D1,B,D2")
PD = opt("pd", 0)
PFMOD = sopt("pfmod", "")
CODEPF = opt("codepf", 0)
OUT = [a for a in sys.argv[1:] if not a.startswith("--")][0]
STAMP_OFF = 128 << 20
G_OFF = 8 << 20
SLOT = 43008
XB = 18432
NEG = 0xF149F2CA
CSC = 0x3EB8AA3B

class VM:
    def __init__(self, a): self.a = a; self.ops = []
    def op(self, tag): self.ops.append(tag)
    def wait(self, tag):
        idx = max(i for i, t in enumerate(self.ops) if t == tag)
        n = len(self.ops) - 1 - idx
        assert n < 64
        self.a(f"s_waitcnt vmcnt({n})")

def stamp(a, i):
    if STAMPS:
        a(f"s_memtime s[{60+2*i}:{61+2*i}]")

def store_stamps(a, n, wsbase, extra_off=0):
    if not STAMPS: return
    a("s_memrealtime s[94:95]")
    a("s_waitcnt lgkmcnt(0)")
    a(f"s_lshl_b32 s58, s2, 3")
    a(f"s_add_u32 s58, s58, s59")
    a(f"s_lshl_b32 s58, s58, 8")
    a(f"s_add_u32 s58, s58, {STAMP_OFF + extra_off}")
    a(f"s_add_u32 s56, s{wsbase}, s58")
    a(f"s_addc_u32 s57, s{wsbase+1}, 0")
    a("v_mov_b32 v2, 0")
    for i in range(18):
        a(f"v_mov_b32 v4, s{60+2*i}")
        a(f"v_mov_b32 v5, s{61+2*i}")
        a(f"global_store_dwordx2 v2, v[4:5], s[56:57] offset:{8*i}")
    a("s_waitcnt vmcnt(0)")

def gen_k1(a, name):
    a(kernel_open(name))
    a("s_cmp_ge_u32 s2, 256")
    a("s_cbranch_scc1 K1_END")
    if STAMPS:
        a("s_memrealtime s[92:93]")
    stamp(a, 0)
    if CODEPF:
        a("""
        s_getpc_b64 s[54:55]
        v_lshlrev_b32 v1, 7, v0
        v_cmp_gt_u32 vcc, %d, v0
        s_and_saveexec_b64 s[56:57], vcc
        global_load_dword v255, v1, s[54:55]
        s_mov_b64 exec, s[56:57]
        """ % CODEPF)
    a("""
    s_load_dwordx4 s[4:7], s[0:1], 0
    s_load_dwordx2 s[8:9], s[0:1], 32
    s_load_dwordx2 s[10:11], s[0:1], 48
    s_load_dwordx2 s[12:13], s[0:1], 72
    v_lshrrev_b32 v1, 6, v0
    v_and_b32 v0, 63, v0
    s_and_b32 s14, s2, 7
    s_lshr_b32 s15, s2, 3
    v_readfirstlane_b32 s3, v1
    v_readfirstlane_b32 s59, v1
    s_and_b32 s16, s14, 1
    s_lshl_b32 s16, s16, 3
    s_and_b32 s17, s15, 7
    s_add_u32 s16, s16, s17          ; s16 = rt
    s_lshr_b32 s17, s14, 1
    s_lshl_b32 s17, s17, 2
    s_lshr_b32 s18, s15, 3
    s_add_u32 s17, s17, s18          ; s17 = cg
    s_lshr_b32 s18, s17, 3           ; s18 = branch
    s_and_b32 s19, s17, 7            ; s19 = hg
    s_cmp_ge_u32 s3, 4
    s_cbranch_scc1 K1_CONS
    """)
    a("""
    v_lshrrev_b32 v1, 3, v0          ; r
    v_and_b32 v2, 7, v0              ; c
    s_and_b32 s33, s3, 1
    s_lshl_b32 s34, s33, 2
    v_lshrrev_b32 v3, 1, v1
    v_add_u32 v3, s34, v3            ; f = 4*(lw&1) + (r>>1)
    v_xor_b32 v3, v2, v3
    v_lshlrev_b32 v3, 4, v3          ; x chunk*16
    s_lshl_b32 s34, s16, 7
    s_lshl_b32 s35, s3, 3
    s_add_u32 s34, s34, s35
    s_sub_u32 s34, s34, 16
    v_add_u32 v4, s34, v1            ; row
    v_max_i32 v5, 0, v4
    v_lshl_add_u32 v16, v5, 10, v3
    v_lshl_add_u32 v5, v4, 10, v3
    v_add_u32 v17, 0x8000, v5
    v_add_u32 v18, 0x10000, v5
    v_add_u32 v19, 0x18000, v5
    v_add_u32 v20, 0x20000, v5
    v_bfe_u32 v3, v1, 1, 1
    s_lshl_b32 s34, s33, 1
    v_or_b32 v3, s34, v3             ; f
    v_lshlrev_b32 v3, 1, v3
    v_xor_b32 v3, v2, v3
    v_lshlrev_b32 v3, 4, v3          ; W chunk*16
    s_lshl_b32 s34, s3, 3
    v_add_u32 v4, s34, v1
    v_mul_u32_u24 v4, 3072, v4
    s_lshl_b32 s34, s19, 7
    v_add3_u32 v4, v4, v3, s34
    """)
    for i in range(6):
        a(f"v_add_u32 v{21+i}, {(i>>1)*1024 + (i&1)*32*3072}, v4")
    a("""
    s_and_b32 s34, s17, 3
    s_lshl_b32 s34, s34, 5
    s_lshl_b32 s35, s16, 7
    s_add_u32 s34, s34, s35
    v_add_u32 v3, s34, v0
    v_lshlrev_b32 v30, 10, v3
    v_cmp_gt_u32 vcc, 32, v0
    v_mov_b32 v6, 0x7ffffff0
    s_and_b32 s34, s16, 7
    s_lshl_b32 s34, s34, 3
    v_cndmask_b32 v30, v6, v30, vcc
    v_add_u32 v3, s34, v2
    v_mul_u32_u24 v3, 3072, v3
    v_lshl_add_u32 v3, v1, 10, v3
    s_lshl_b32 s34, s19, 7
    v_add_u32 v3, s34, v3
    v_cmp_gt_u32 vcc, 24, v0
    s_cmp_eq_u32 s3, 3
    s_cselect_b64 s[46:47], -1, 0
    v_cndmask_b32 v3, v6, v3, vcc
    s_movk_i32 s52, 128
    s_cselect_b32 s52, 196608, s52
    v_cndmask_b32 v30, v30, v3, s[46:47]
    """)
    a("""
    s_lshl_b32 s34, s16, 7
    s_lshl_b32 s35, s17, 3
    s_add_u32 s34, s34, s35
    s_lshl_b32 s35, s3, 1
    s_add_u32 s34, s34, s35
    v_lshrrev_b32 v3, 5, v0
    v_add_u32 v3, s34, v3            ; token
    v_and_b32 v4, 31, v0
    v_lshlrev_b32 v28, 5, v4         ; gate_w offset
    v_lshl_add_u32 v27, v3, 10, v28  ; x offset
    v_lshlrev_b32 v29, 2, v3
    v_add_u32 v29, %d, v29           ; g store offset in ws
    s_lshl_b32 s36, s3, 10           ; lw*1024
    s_waitcnt lgkmcnt(0)
    s_mov_b32 s20, s4
    s_mov_b32 s21, s5
    s_mov_b32 s22, 0x200000
    s_mov_b32 s23, 0x20000
    s_cmp_eq_u32 s18, 0
    s_cselect_b32 s24, s6, s8
    s_cselect_b32 s25, s7, s9
    s_mov_b32 s26, 0x180000
    s_mov_b32 s27, 0x20000
    s_mov_b32 s28, s12
    s_mov_b32 s29, s13
    s_mov_b32 s30, 0x10000000
    s_mov_b32 s31, 0x20000
    s_mov_b32 s40, s10
    s_mov_b32 s41, s11
    s_mov_b32 s42, 1024
    s_mov_b32 s43, 0x20000
    """ % G_OFF)
    if ROT == 0: a("s_mov_b32 s39, 0")
    elif ROT == 1: a("s_lshl_b32 s39, s17, 1\ns_add_u32 s39, s39, s16")
    elif ROT == 2: a("s_xor_b32 s39, s17, s16\ns_and_b32 s39, s39, 1\ns_lshl_b32 s39, s39, 2")
    elif ROT == 3: a("s_add_u32 s39, s17, s16\ns_lshl_b32 s39, s39, 1")
    a("""
    s_cmp_eq_u32 s3, 3
    s_cselect_b32 s44, s24, s20
    s_cselect_b32 s45, s25, s21
    s_cselect_b32 s46, s26, s22
    s_mov_b32 s47, 0x20000
    """)
    if True:
        vm = VM(a)
        stamp(a, 1)
        def pf(s):
            if s > 7: return
            lab = a.label("pf")
            a("s_cmp_ge_u32 s3, 2")
            a(f"s_cbranch_scc0 {lab}")
            a(f"s_mul_i32 s53, s52, {s}")
            a(f"buffer_load_dword v31, v30, s[44:47], s53 offen {PFMOD}")
            a(f"{lab}:")
        def issue(s, pfs=None):
            slot = (s % 3) * SLOT
            a(f"s_add_u32 s37, s39, {s}")
            a(f"s_and_b32 s37, s37, 7")
            a(f"s_mul_i32 s38, s37, {64*3072}")
            a(f"s_lshl_b32 s37, s37, 7")
            l1 = a.label("ex"); l2 = a.label("ex")
            a("s_cmp_ge_u32 s3, 2")
            a(f"s_cbranch_scc1 {l1}")
            a(f"s_add_u32 m0, s36, {slot + 4096*4}")
            a("s_nop 0")
            a(f"buffer_load_dwordx4 v20, s[20:23], s37 offen lds")
            a(f"{l1}:")
            order = []
            for i in range(6):
                order.append(("w", i))
                if i < 4: order.append(("x", i))
            for kind, i in order:
                if kind == "x":
                    a(f"s_add_u32 m0, s36, {slot + 4096*i}")
                    a("s_nop 0")
                    a(f"buffer_load_dwordx4 v{16+i}, s[20:23], s37 offen lds")
                else:
                    a(f"s_add_u32 m0, s36, {slot + XB + 4096*i}")
                    a("s_nop 0")
                    a(f"buffer_load_dwordx4 v{21+i}, s[24:27], s38 offen lds")
                vm.op(f"st{s}")
        for tok in SEQ.split(","):
            if tok[0] == "D": issue(int(tok[1:])); stamp(a, 2 + int(tok[1:]))
            elif tok[0] == "P": pf(int(tok[1:]))
            elif tok[0] == "B":
                vm.wait("st0"); stamp(a, 5); a("s_barrier")
        a("buffer_load_dwordx4 v[32:35], v27, s[20:23], 0 offen"); vm.op("g")
        a("buffer_load_dwordx4 v[36:39], v27, s[20:23], 0 offen offset:16"); vm.op("g")
        a("buffer_load_dwordx4 v[40:43], v28, s[40:43], 0 offen"); vm.op("g")
        a("buffer_load_dwordx4 v[44:47], v28, s[40:43], 0 offen offset:16"); vm.op("g")
        for s in range(7):
            vm.wait(f"st{s+1}")
            stamp(a, 6+s)
            a("s_barrier")
            if PD: pf(s + PD)
            if s + 3 <= 7: issue(s + 3)
            if s == (6 if NOGATE else 1):
                vm.wait("g")
                a("v_mov_b32 v60, 0")
                a("v_mov_b32 v61, 0")
                for j in range(8):
                    a(f"""
                    v_lshlrev_b32 v50, 16, v{32+j}
                    v_and_b32 v51, 0xffff0000, v{32+j}
                    v_lshlrev_b32 v52, 16, v{40+j}
                    v_and_b32 v53, 0xffff0000, v{40+j}
                    v_mul_f32 v50, v50, v52
                    v_mul_f32 v51, v51, v53
                    v_cvt_pk_bf16_f32 v50, v50, v51
                    v_lshlrev_b32 v52, 16, v50
                    v_and_b32 v53, 0xffff0000, v50
                    v_add_f32 v60, v60, v52
                    v_add_f32 v61, v61, v53
                    """)
                a("v_add_f32 v60, v60, v61")
                for rot in (8, 4, 2, 1):
                    a("s_nop 1")
                    a(f"v_add_f32_dpp v60, v60, v60 row_ror:{rot} row_mask:0xf bank_mask:0xf")
                a("""
                v_mov_b32 v61, v60
                s_nop 1
                v_permlane16_swap_b32 v60, v61
                s_nop 1
                v_add_f32 v60, v60, v61
                v_cvt_pk_bf16_f32 v60, v60, v60
                v_lshlrev_b32 v60, 16, v60
                v_mul_f32 v60, 0xbfb8aa3b, v60
                v_exp_f32 v60, v60
                s_nop 0
                v_add_f32 v60, 1.0, v60
                v_rcp_f32 v60, v60
                s_nop 0
                v_cvt_pk_bf16_f32 v60, v60, v60
                v_lshlrev_b32 v60, 16, v60
                s_mov_b32 exec_lo, 1
                s_mov_b32 exec_hi, 1
                buffer_store_dword v60, v29, s[28:31], 0 offen
                s_mov_b64 exec, -1
                """)
                vm.op("gs")
        a("s_waitcnt vmcnt(0)")
        store_stamps(a, 5, 12)
        a("s_endpgm")
    a("K1_CONS:")
    a("s_sub_u32 s3, s3, 4")
    QA, KA, VA = 16, 48, 84
    FA = (120, 168)
    CCUR, CPREV, CPF, PM, ONES = 216, 220, 224, 228, 232
    a("""
    v_lshrrev_b32 v1, 4, v0          ; g
    v_and_b32 v2, 15, v0             ; n
    v_lshrrev_b32 v3, 1, v2
    v_xor_b32 v3, v1, v3
    v_lshlrev_b32 v3, 4, v3
    v_lshl_add_u32 v4, v2, 7, v3     ; xaddr sub0 slot0
    v_xor_b32 v5, 64, v4             ; xaddr sub1 slot0
    v_add_u32 v6, %d, v4
    v_add_u32 v7, %d, v5
    v_add_u32 v8, %d, v4
    v_add_u32 v9, %d, v5
    v_lshrrev_b32 v3, 2, v2          ; r
    v_lshl_add_u32 v10, v1, 3, v3    ; 8g + r
    v_lshlrev_b32 v10, 7, v10
    v_lshrrev_b32 v3, 1, v3
    v_and_b32 v14, 1, v1
    v_lshl_or_b32 v3, v14, 1, v3     ; f
    v_xor_b32 v3, s3, v3
    v_lshl_add_u32 v10, v3, 5, v10
    v_and_b32 v3, 3, v2
    v_lshl_add_u32 v10, v3, 3, v10
    v_add_u32 v10, %d, v10           ; waddr slot0
    v_add_u32 v11, %d, v10
    v_add_u32 v12, %d, v10
    """ % (SLOT, SLOT, 2*SLOT, 2*SLOT, XB, SLOT, 2*SLOT))
    a("""
    s_lshl_b32 s33, s19, 2
    s_add_u32 s33, s33, s3           ; h
    s_lshl_b32 s34, s16, 18          ; 8rt*32768
    s_lshl_b32 s35, s18, 14
    s_add_u32 s34, s34, s35
    s_lshr_b32 s35, s33, 1
    s_lshl_b32 s35, s35, 10
    s_add_u32 s34, s34, s35
    s_and_b32 s35, s33, 1
    s_lshl_b32 s35, s35, 9
    s_add_u32 s34, s34, s35
    v_and_b32 v3, 1, v1
    v_lshlrev_b32 v13, 15, v3
    v_lshrrev_b32 v3, 1, v1
    v_lshl_add_u32 v13, v3, 8, v13
    v_lshl_add_u32 v13, v2, 4, v13
    v_add_u32 v13, s34, v13
    """)
    a(f"s_mov_b32 s35, {NEG}")
    a("v_lshlrev_b32 v3, 2, v1")
    a("v_sub_u32 v3, v2, v3             ; n - 4g")
    for i in range(4):
        a(f"""
        v_subrev_u32 v14, {i}, v3        ; d = n - 4g - i
        v_and_b32 v15, 1, v14
        v_cmp_eq_u32 s[44:45], 0, v15    ; even
        v_cmp_le_i32 s[46:47], 0, v14    ; d >= 0
        s_nop 1
        s_and_b64 s[48:49], s[44:45], s[46:47]
        s_andn2_b64 s[50:51], s[44:45], s[46:47]
        v_mov_b32 v15, s35
        v_cndmask_b32 v{CCUR+i}, v15, 0, s[48:49]
        v_cndmask_b32 v{CPREV+i}, v15, 0, s[50:51]
        v_mov_b32 v14, {"0xffff" if i % 2 == 0 else "0xffff0000"}
        v_cndmask_b32 v{236+i}, 0, v14, s[50:51]
        v_cndmask_b32 v{240+i}, 0, v14, s[48:49]
        """)
    a(f"""
    v_or_b32 v{PM}, v236, v237
    v_or_b32 v{PM+1}, v238, v239
    v_or_b32 v{PM+2}, v240, v241
    v_or_b32 v{PM+3}, v242, v243
    s_cmp_eq_u32 s16, 0
    s_cselect_b64 s[44:45], -1, 0
    v_mov_b32 v15, s35
    """)
    for i in range(4):
        a(f"v_cndmask_b32 v{CPF+i}, v{CPREV+i}, v15, s[44:45]")
        a(f"v_mov_b32 v{ONES+i}, 0x3f803f80")
    a("""
    s_waitcnt lgkmcnt(0)
    s_mov_b32 s28, s12
    s_mov_b32 s29, s13
    s_mov_b32 s30, 0x10000000
    s_mov_b32 s31, 0x20000
    """)
    def reads(s, sub, fs):
        slot = s % 3
        base = FA[fs]
        r = []
        for sec in range(3):
            for half in range(2):
                r.append(f"ds_read_b64_tr_b16 {vr(base+36+4*sec+2*half, 2)}, v{10+slot} offset:{sec*8192 + sub*4096 + half*512}")
        for T in range(9):
            r.append(f"ds_read_b128 {vr(base+4*T, 4)}, v{4+2*slot+sub} offset:{T*2048}")
        return r
    def mfmas(fs, first):
        base = FA[fs]
        m = []
        X = lambda T: vr(base + 4*T, 4)
        W = lambda sec: vr(base + 36 + 4*sec, 4)
        for T in range(9):
            d = vr(KA + 4*T, 4); m.append(f"v_mfma_f32_16x16x32_bf16 {d}, {W(1)}, {X(T)}, {0 if first else d}")
            d = vr(VA + 4*T, 4); m.append(f"v_mfma_f32_16x16x32_bf16 {d}, {X(T)}, {W(2)}, {0 if first else d}")
            if T >= 1:
                d = vr(QA + 4*(T-1), 4); m.append(f"v_mfma_f32_16x16x32_bf16 {d}, {W(0)}, {X(T)}, {0 if first else d}")
        return m
    def interleave(m, r):
        for i, x in enumerate(m):
            a(x)
            if i < len(r): a(r[i])
    stamp(a, 1)
    a("s_barrier")
    stamp(a, 2)
    for x in reads(0, 0, 0): a(x)
    a("s_waitcnt lgkmcnt(0)")
    for s in range(8):
        interleave(mfmas(0, s == 0), reads(s, 1, 1))
        a("s_waitcnt lgkmcnt(0)")
        if s < 7:
            a("s_barrier")
            stamp(a, 3+s)
            interleave(mfmas(1, False), reads(s + 1, 0, 0))
            a("s_waitcnt lgkmcnt(0)")
        else:
            interleave(mfmas(1, False), [])
    stamp(a, 10)
    QP, KP, VP = 120, 136, 154
    L, M, TMP = 80, 96, 104
    a("s_nop 7")
    for T in range(9):
        a(f"v_cvt_pk_bf16_f32 v{KP+2*T}, v{KA+4*T}, v{KA+4*T+1}")
        a(f"v_cvt_pk_bf16_f32 v{KP+2*T+1}, v{KA+4*T+2}, v{KA+4*T+3}")
        a(f"v_cvt_pk_bf16_f32 v{VP+2*T}, v{VA+4*T}, v{VA+4*T+1}")
        a(f"v_cvt_pk_bf16_f32 v{VP+2*T+1}, v{VA+4*T+2}, v{VA+4*T+3}")
        if T >= 1:
            a(f"v_cvt_pk_bf16_f32 v{QP+2*(T-1)}, v{QA+4*(T-1)}, v{QA+4*(T-1)+1}")
            a(f"v_cvt_pk_bf16_f32 v{QP+2*(T-1)+1}, v{QA+4*(T-1)+2}, v{QA+4*(T-1)+3}")
    a("s_nop 1")
    SC = lambda T: 16 + 8*(T-1)
    for T in range(1, 9):
        q = vr(QP + 2*(T-1), 2)
        a(f"v_mfma_f32_16x16x16_bf16 {vr(SC(T),4)}, {vr(KP+2*T,2)}, {q}, {vr(CCUR,4)}")
        a(f"v_mfma_f32_16x16x16_bf16 {vr(SC(T)+4,4)}, {vr(KP+2*(T-1),2)}, {q}, {vr(CPF if T == 1 else CPREV,4)}")
    a("s_nop 7")
    for T in range(1, 9):
        s0 = SC(T); l = L + 2*(T-1)
        a(f"v_max3_f32 v{l}, v{s0}, v{s0+1}, v{s0+4}")
        a(f"v_max3_f32 v{l+1}, v{s0+2}, v{s0+3}, v{s0+6}")
        a(f"v_max_f32 v{l}, v{l}, v{s0+5}")
        a(f"v_max_f32 v{l+1}, v{l+1}, v{s0+7}")
        a(f"v_max_f32 v{M+T-1}, v{l}, v{l+1}")
    a(f"s_mov_b32 s35, {CSC}")
    B = [(M, M+1, M+2, M+3), (M+4, M+5, M+6, M+7)]
    a("s_nop 0")
    for (p, q, r, s) in B:
        a(f"v_permlane32_swap_b32 v{p}, v{q}")
        a(f"v_permlane32_swap_b32 v{r}, v{s}")
    a("s_nop 0")
    for (p, q, r, s) in B:
        a(f"v_max_f32 v{p}, v{p}, v{q}")
        a(f"v_max_f32 v{r}, v{r}, v{s}")
    a("s_nop 1")
    for (p, q, r, s) in B:
        a(f"v_permlane16_swap_b32 v{p}, v{r}")
    a("s_nop 1")
    for (p, q, r, s) in B:
        a(f"v_max_f32 v{p}, v{p}, v{r}")
    for (p, q, r, s) in B:
        a(f"v_mul_f32 v{p}, s35, v{p}")
    for (p, q, r, s) in B:
        a(f"v_mov_b32 v{r}, v{p}")
    a("s_nop 1")
    for (p, q, r, s) in B:
        a(f"v_permlane16_swap_b32 v{p}, v{r}")
    a("s_nop 1")
    for (p, q, r, s) in B:
        a(f"v_mov_b32 v{q}, v{p}")
        a(f"v_mov_b32 v{s}, v{r}")
    a("s_nop 1")
    for (p, q, r, s) in B:
        a(f"v_permlane32_swap_b32 v{p}, v{q}")
        a(f"v_permlane32_swap_b32 v{r}, v{s}")
    a("s_nop 1")
    for T in range(1, 9):
        l = L + 2*(T-1)
        a(f"v_fma_f32 v{l}, v{l}, s35, -v{M+T-1}")
        a(f"v_fma_f32 v{l+1}, v{l+1}, s35, -v{M+T-1}")
    for T in range(1, 9):
        l = L + 2*(T-1)
        a(f"v_exp_f32 v{l}, v{l}")
        a(f"v_exp_f32 v{l+1}, v{l+1}")
    a("s_nop 0")
    for T in range(1, 9):
        l = L + 2*(T-1)
        a(f"v_cvt_pk_bf16_f32 v{l}, v{l}, v{l}")
        a(f"v_cvt_pk_bf16_f32 v{l+1}, v{l+1}, v{l+1}")
    PR = lambda T: 16 + 4*(T-1)
    for T in range(1, 9):
        l = L + 2*(T-1); p = PR(T)
        a(f"v_and_b32 v{p}, v{l}, v{PM}")
        a(f"v_and_b32 v{p+1}, v{l+1}, v{PM+1}")
        a(f"v_and_b32 v{p+2}, v{l}, v{PM+2}")
        a(f"v_and_b32 v{p+3}, v{l+1}, v{PM+3}")
    a("s_nop 1")
    OO = lambda T: 48 + 4*(T-1)
    SUM = lambda T: 176 + 4*(T-1)
    for T in range(1, 9):
        a(f"v_mfma_f32_16x16x32_bf16 {vr(SUM(T),4)}, {vr(ONES,4)}, {vr(PR(T),4)}, 0")
        a(f"v_mfma_f32_16x16x32_bf16 {vr(OO(T),4)}, {vr(VP+2*(T-1),4)}, {vr(PR(T),4)}, 0")
    a("s_nop 7")
    for T in range(1, 9):
        a(f"v_rcp_f32 v{M+T-1}, v{SUM(T)}")
    a("s_nop 0")
    for T in range(1, 9):
        o = OO(T)
        for i in range(4):
            a(f"v_mul_f32 v{o+i}, v{o+i}, v{M+T-1}")
    for i in range(4):
        ob = 80 + 4*i
        o0, o1 = OO(2*i+1), OO(2*i+2)
        a(f"v_cvt_pk_bf16_f32 v{ob}, v{o0}, v{o0+1}")
        a(f"v_cvt_pk_bf16_f32 v{ob+1}, v{o0+2}, v{o0+3}")
        a(f"v_cvt_pk_bf16_f32 v{ob+2}, v{o1}, v{o1+1}")
        a(f"v_cvt_pk_bf16_f32 v{ob+3}, v{o1+2}, v{o1+3}")
    a("s_nop 1")
    for i in range(4):
        ob = 80 + 4*i
        a(f"v_permlane16_swap_b32 v{ob}, v{ob+2}")
        a(f"v_permlane16_swap_b32 v{ob+1}, v{ob+3}")
        a(f"s_mov_b32 s33, {65536*i}")
        a(f"buffer_store_dwordx4 {vr(ob,4)}, v13, s[28:31], s33 offen")
    stamp(a, 11)
    a("s_waitcnt vmcnt(0)")
    stamp(a, 12)
    if STAMPS:
        store_stamps(a, 5, 12)
    a("K1_END:")
    a("s_endpgm")

def gen_k2(a, name):
    a(kernel_open(name))
    a("s_cmp_ge_u32 s2, 256")
    a("s_cbranch_scc1 K2_END")
    if STAMPS:
        a("s_memrealtime s[92:93]")
    stamp(a, 0)
    XCH = 131072
    a("""
    s_load_dwordx2 s[4:5], s[0:1], 16
    s_load_dwordx2 s[6:7], s[0:1], 40
    s_load_dwordx2 s[8:9], s[0:1], 56
    s_load_dwordx2 s[12:13], s[0:1], 72
    v_lshrrev_b32 v1, 6, v0
    v_and_b32 v0, 63, v0
    s_and_b32 s14, s2, 7
    s_lshr_b32 s15, s2, 3
    v_readfirstlane_b32 s3, v1
    v_readfirstlane_b32 s59, v1
    s_and_b32 s16, s15, 3
    s_lshl_b32 s14, s14, 2
    s_add_u32 s16, s16, s14          ; rt2
    s_lshr_b32 s17, s15, 2           ; ct
    s_lshr_b32 s18, s3, 2            ; b
    s_and_b32 s19, s3, 3             ; rq
    s_lshl_b32 s33, s16, 2
    s_add_u32 s33, s33, s19          ; t (16-token tile)
    ; wo DMA offsets
    v_lshrrev_b32 v1, 3, v0          ; r
    v_and_b32 v2, 7, v0              ; c
    v_bfe_u32 v3, v1, 1, 1
    v_lshlrev_b32 v3, 1, v3
    v_xor_b32 v3, v2, v3             ; chunk for even pieces
    v_xor_b32 v4, 4, v3              ; chunk for odd pieces
    s_lshl_b32 s34, s19, 17          ; rq*128 rows*1024
    s_lshl_b32 s35, s17, 7
    s_add_u32 s34, s34, s35
    v_lshl_add_u32 v1, v1, 10, s34
    v_lshl_add_u32 v16, v3, 4, v1    ; even
    v_lshl_add_u32 v17, v4, 4, v1
    v_add_u32 v17, 8192, v17         ; odd
    ; o offsets
    s_lshl_b32 s34, s33, 1
    s_add_u32 s34, s34, s18
    s_lshl_b32 s34, s34, 14
    v_lshl_add_u32 v18, v0, 4, s34
    ; lane decomposition
    v_lshrrev_b32 v1, 4, v0          ; g
    v_and_b32 v2, 15, v0             ; n
    s_lshl_b32 s34, s33, 4
    v_add_u32 v3, s34, v2            ; token
    v_lshlrev_b32 v19, 2, v3
    v_add_u32 v19, %d, v19           ; gate offset
    s_lshl_b32 s34, s17, 7
    s_lshl_b32 s35, s18, 6
    s_add_u32 s34, s34, s35
    v_lshl_add_u32 v20, v3, 10, s34
    v_and_b32 v3, 1, v1
    v_lshl_add_u32 v20, v3, 5, v20
    v_lshrrev_b32 v3, 1, v1
    v_lshl_add_u32 v20, v3, 4, v20   ; out offset
    ; tr-read addresses v8..v11 (j = 0..3)
    v_lshrrev_b32 v3, 2, v2          ; r
    v_lshl_add_u32 v4, v1, 3, v3
    v_lshlrev_b32 v4, 7, v4
    v_lshrrev_b32 v3, 1, v3
    v_and_b32 v5, 1, v1
    v_lshl_or_b32 v3, v5, 1, v3      ; f
    v_and_b32 v5, 3, v2
    v_lshl_add_u32 v4, v5, 3, v4
    s_lshl_b32 s34, s18, 16
    v_add_u32 v4, s34, v4
    """ % G_OFF)
    for j in range(4):
        a(f"v_xor_b32 v5, {j}, v3")
        a(f"v_lshl_add_u32 v{8+j}, v5, 5, v4")
    a(f"""
    s_lshl_b32 s34, s3, 11
    s_add_u32 s34, s34, {XCH}
    v_lshl_add_u32 v12, v0, 4, s34
    v_xor_b32 v13, 8192, v12
    s_lshl_b32 s36, s3, 14
    s_waitcnt lgkmcnt(0)
    s_cmp_eq_u32 s18, 0
    s_cselect_b32 s24, s4, s6
    s_cselect_b32 s25, s5, s7
    s_mov_b32 s26, 0x80000
    s_mov_b32 s27, 0x20000
    s_mov_b32 s28, s12
    s_mov_b32 s29, s13
    s_mov_b32 s30, 0x10000000
    s_mov_b32 s31, 0x20000
    s_mov_b32 s20, s8
    s_mov_b32 s21, s9
    s_mov_b32 s22, 0x200000
    s_mov_b32 s23, 0x20000
    """)
    vm = VM(a)
    for i in range(16):
        a(f"s_add_u32 m0, s36, {1024*i}")
        a(f"s_mov_b32 s37, {(i >> 1)*16384}")
        a(f"buffer_load_dwordx4 v{16+(i&1)}, s[24:27], s37 offen lds"); vm.op("wo")
    OF = 64
    for s in range(16):
        if s % 4 == 0: a(f"s_mov_b32 s37, {(s >> 2)*4096}")
        a(f"buffer_load_dwordx4 {vr(OF+4*s,4)}, v18, s[28:31], s37 offen offset:{(s&3)*1024}"); vm.op(f"o{s}")
    a("buffer_load_dword v21, v19, s[28:31], 0 offen"); vm.op("g")
    vm.wait("wo")
    a("s_barrier")
    stamp(a, 1)
    ACC = 24
    WF = (128, 144)
    def reads(s):
        r = []
        for j in range(4):
            for half in range(2):
                r.append(f"ds_read_b64_tr_b16 {vr(WF[s&1]+4*j+2*half,2)}, v{8+j} offset:{s*4096+half*512}")
        return r
    for x in reads(0): a(x)
    for s in range(16):
        r = reads(s + 1) if s < 15 else []
        for x in r: a(x)
        a(f"s_waitcnt lgkmcnt({len(r)})")
        vm.wait(f"o{s}")
        for j in range(4):
            d = vr(ACC + 4*j, 4)
            a(f"v_mfma_f32_16x16x32_bf16 {d}, {vr(WF[s&1]+4*j,4)}, {vr(OF+4*s,4)}, {0 if s == 0 else d}")
    stamp(a, 2)
    a("s_nop 7")
    a("s_cmp_eq_u32 s18, 0")
    a("s_cbranch_scc0 K2_B1")
    for b in range(2):
        if b == 1: a("K2_B1:")
        give = ACC + 8*(1-b); keep = ACC + 8*b
        a(f"ds_write_b128 v12, {vr(give,4)}")
        a(f"ds_write_b128 v12, {vr(give+4,4)} offset:1024")
        a("s_waitcnt lgkmcnt(0)")
        a("s_barrier")
        a(f"ds_read_b128 v[48:51], v13")
        a(f"ds_read_b128 v[52:55], v13 offset:1024")
        a("s_waitcnt vmcnt(0)")
        a("v_sub_f32 v22, 1.0, v21")
        a("v_cvt_pk_bf16_f32 v22, v22, v22")
        a("v_lshlrev_b32 v22, 16, v22")
        ck, cr = (21, 22) if b == 0 else (22, 21)
        for i in range(8):
            a(f"v_mul_f32 v{keep+i}, v{keep+i}, v{ck}")
        a("s_waitcnt lgkmcnt(0)")
        for i in range(8):
            a(f"v_fmac_f32 v{keep+i}, v{48+i}, v{cr}")
        for i in range(4):
            a(f"v_cvt_pk_bf16_f32 v{56+i}, v{keep+2*i}, v{keep+2*i+1}")
        a("s_nop 1")
        a("v_permlane16_swap_b32 v56, v58")
        a("v_permlane16_swap_b32 v57, v59")
        a("buffer_store_dwordx4 v[56:59], v20, s[20:23], 0 offen")
        if b == 0: a("s_branch K2_FIN")
    a("K2_FIN:")
    stamp(a, 3)
    a("s_waitcnt vmcnt(0)")
    stamp(a, 4)
    if STAMPS:
        store_stamps(a, 5, 12, 256*8*256)
    a("K2_END:")
    a("s_endpgm")

a = Asm()
a.lines.append(HEADER.rstrip())
a.lines.append("; @launch kernel=gm_p1_kernel grid=(256,1,1) block=(512,1,1) lds=129024")
a.lines.append("; @launch kernel=gm_p2_kernel grid=(256,1,1) block=(512,1,1) lds=147456")
a('.amdgcn_target "amdgcn-amd-amdhsa--gfx950"')
a(".text")
gen_k1(a, "gm_p1_kernel")
gen_k2(a, "gm_p2_kernel")
a('.section .rodata,"a"')
a(".p2align 6")
a(descriptor("gm_p1_kernel", 256))
a(".p2align 6")
a(descriptor("gm_p2_kernel", 256))
open(OUT, "w").write(a.text())
```

```python
import sys
from asmlib import *

def opt(name, default):
    for x in sys.argv:
        if x.startswith(f"--{name}="): return int(x.split("=")[1])
    return default
def sopt(name, default):
    for x in sys.argv:
        if x.startswith(f"--{name}="): return x.split("=")[1]
    return default
STAMPS = "--stamps" in sys.argv
OUT = [a for a in sys.argv[1:] if not a.startswith("--")][0]
ROT = opt("rot", 1)
PRO = opt("pro", 2)
XFIRST = opt("xfirst", 1)
CODEPF = opt("codepf", 1)
TOUCH = opt("touch", 1)
PRE = opt("pre", 7)
OINF = opt("oinf", 16)
OUTMOD = sopt("outmod", "")
ROT2 = opt("rot2", 1)

STAMP_OFF = 128 << 20
G_OFF = 8 << 20
F_OFF = 9 << 20
SLOT = 43008
SLOTADDR = {1: 0, 0: SLOT, 2: 2 * SLOT}
XB = 18432
WB = 31744
CNT = 162816
LDS_BYTES = 163840
NEG = 0xF149F2CA
CSC = 0x3EB8AA3B
SPIN = 1 << 18

class VM:
    def __init__(self, a): self.a = a; self.ops = []
    def op(self, tag): self.ops.append(tag)
    def wait(self, tag):
        idx = max(i for i, t in enumerate(self.ops) if t == tag)
        n = len(self.ops) - 1 - idx
        assert n < 64
        self.a(f"s_waitcnt vmcnt({n})")

def stamp(a, i):
    if STAMPS: a(f"s_memtime s[{60+2*i}:{61+2*i}]")

def store_stamps(a):
    if not STAMPS: return
    a("s_memrealtime s[94:95]")
    a("s_waitcnt lgkmcnt(0)")
    a(f"""
    s_lshl_b32 s58, s2, 3
    s_add_u32 s58, s58, s3
    s_lshl_b32 s58, s58, 8
    s_add_u32 s58, s58, {STAMP_OFF}
    s_add_u32 s56, s22, s58
    s_addc_u32 s57, s23, 0
    v_mov_b32 v2, 0
    """)
    for i in range(18):
        a(f"v_mov_b32 v4, s{60+2*i}")
        a(f"v_mov_b32 v5, s{61+2*i}")
        a(f"global_store_dwordx2 v2, v[4:5], s[56:57] offset:{8*i}")
    a("s_waitcnt vmcnt(0)")

def srd(a, d, lo, size):
    a(f"s_mov_b32 s{d}, s{lo}\ns_mov_b32 s{d+1}, s{lo+1}\ns_mov_b32 s{d+2}, {size}\ns_mov_b32 s{d+3}, 0x20000")

X, W, WS, G, WOA, WOB, DBG = 24, 28, 32, 36, 40, 44, 48
RT, CG, BR, HG, RT2, CT, ROT1S, ROT2S = 52, 53, 54, 55, 96, 97, 98, 99
T0, T1, T2, T3 = 56, 57, 58, 59

def gen(a, name):
    a(kernel_open(name))
    a("s_cmp_ge_u32 s2, 256")
    a("s_cbranch_scc1 K_END")
    if STAMPS: a("s_memrealtime s[92:93]")
    stamp(a, 0)
    a(f"""
    s_load_dwordx16 s[4:19], s[0:1], 0
    s_load_dwordx4 s[20:23], s[0:1], 64
    v_lshrrev_b32 v1, 6, v0
    v_and_b32 v0, 63, v0
    s_and_b32 s{T0}, s2, 7
    s_lshr_b32 s{T1}, s2, 3
    v_readfirstlane_b32 s3, v1
    s_and_b32 s{RT}, s{T0}, 1
    s_lshl_b32 s{RT}, s{RT}, 3
    s_and_b32 s{T2}, s{T1}, 7
    s_add_u32 s{RT}, s{RT}, s{T2}
    s_lshr_b32 s{CG}, s{T0}, 1
    s_lshl_b32 s{CG}, s{CG}, 2
    s_lshr_b32 s{T2}, s{T1}, 3
    s_add_u32 s{CG}, s{CG}, s{T2}
    s_lshr_b32 s{BR}, s{CG}, 3
    s_and_b32 s{HG}, s{CG}, 7
    s_and_b32 s{RT2}, s{T1}, 3
    s_lshr_b32 s{CT}, s{T1}, 2
    s_lshl_b32 s{ROT2S}, s{RT2}, 1
    s_add_u32 s{ROT2S}, s{ROT2S}, s{CT}
    s_lshl_b32 s{ROT2S}, s{ROT2S}, 1
    s_lshl_b32 s{T0}, s{T0}, 2
    s_add_u32 s{RT2}, s{RT2}, s{T0}
    """)
    if not ROT2: a(f"s_mov_b32 s{ROT2S}, 0")
    a("s_cmp_ge_u32 s3, 4")
    a("s_cbranch_scc1 K_CONS")
    a(f"""
    v_lshrrev_b32 v1, 3, v0          ; r
    v_and_b32 v2, 7, v0              ; c
    s_and_b32 s{T0}, s3, 1
    s_lshl_b32 s{T1}, s{T0}, 2
    v_lshrrev_b32 v3, 1, v1
    v_add_u32 v3, s{T1}, v3
    v_xor_b32 v3, v2, v3
    v_lshlrev_b32 v3, 4, v3          ; x chunk*16
    s_lshl_b32 s{T1}, s{RT}, 7
    s_lshl_b32 s{T2}, s3, 3
    s_add_u32 s{T1}, s{T1}, s{T2}
    s_sub_u32 s{T1}, s{T1}, 16
    v_add_u32 v4, s{T1}, v1
    v_max_i32 v5, 0, v4
    v_lshl_add_u32 v16, v5, 10, v3
    v_lshl_add_u32 v5, v4, 10, v3
    v_add_u32 v17, 0x8000, v5
    v_add_u32 v18, 0x10000, v5
    v_add_u32 v19, 0x18000, v5
    v_add_u32 v20, 0x20000, v5
    v_bfe_u32 v3, v1, 1, 1
    s_lshl_b32 s{T1}, s{T0}, 1
    v_or_b32 v3, s{T1}, v3
    v_lshlrev_b32 v3, 1, v3
    v_xor_b32 v3, v2, v3
    v_lshlrev_b32 v3, 4, v3
    v_add_u32 v4, s{T2}, v1          ; 8*lw + r
    s_lshl_b32 s{T1}, s{CT}, 7
    v_lshl_add_u32 v27, v4, 10, v3
    v_add_u32 v27, s{T1}, v27
    v_mul_u32_u24 v4, 3072, v4
    s_lshl_b32 s{T1}, s{HG}, 7
    v_add3_u32 v4, v4, v3, s{T1}
    """)
    for i in range(6):
        a(f"v_add_u32 v{21+i}, {(i>>1)*1024 + (i&1)*32*3072}, v4")
    if ROT == 0: a(f"s_mov_b32 s{ROT1S}, 0")
    elif ROT == 1: a(f"s_lshl_b32 s{ROT1S}, s{CG}, 1\ns_add_u32 s{ROT1S}, s{ROT1S}, s{RT}")
    elif ROT == 3: a(f"s_add_u32 s{ROT1S}, s{CG}, s{RT}\ns_lshl_b32 s{ROT1S}, s{ROT1S}, 1")
    a(f"s_lshl_b32 s100, s3, 10")
    a("s_waitcnt lgkmcnt(0)")
    srd(a, X, 4, 0x200000)
    a(f"""
    s_cmp_eq_u32 s{BR}, 0
    s_cselect_b32 s{W}, s6, s12
    s_cselect_b32 s{W+1}, s7, s13
    s_mov_b32 s{W+2}, 0x180000
    s_mov_b32 s{W+3}, 0x20000
    """)
    vm = VM(a)
    stamp(a, 1)
    def issue(s):
        slot = SLOTADDR[s % 3]
        a(f"s_add_u32 s{T0}, s{ROT1S}, {s}")
        a(f"s_and_b32 s{T0}, s{T0}, 7")
        a(f"s_mul_i32 s{T1}, s{T0}, {64*3072}")
        a(f"s_lshl_b32 s{T0}, s{T0}, 7")
        l1 = a.label("ex")
        a("s_cmp_ge_u32 s3, 2")
        a(f"s_cbranch_scc1 {l1}")
        a(f"s_add_u32 m0, s100, {slot + 4096*4}")
        a("s_nop 0")
        a(f"buffer_load_dwordx4 v20, s[{X}:{X+3}], s{T0} offen lds")
        a(f"{l1}:")
        if XFIRST: order = [("x", i) for i in range(4)] + [("w", i) for i in range(6)]
        else:
            order = []
            for i in range(6):
                order.append(("w", i))
                if i < 4: order.append(("x", i))
        for kind, i in order:
            if kind == "x":
                a(f"s_add_u32 m0, s100, {slot + 4096*i}")
                a("s_nop 0")
                a(f"buffer_load_dwordx4 v{16+i}, s[{X}:{X+3}], s{T0} offen lds")
            else:
                a(f"s_add_u32 m0, s100, {slot + XB + 4096*i}")
                a("s_nop 0")
                a(f"buffer_load_dwordx4 v{21+i}, s[{W}:{W+3}], s{T1} offen lds")
            vm.op(f"st{s}")
    def wo_issue(lst):
        for b, i in lst:
            a(f"s_add_u32 s{T0}, s{ROT2S}, {i}")
            a(f"s_and_b32 s{T0}, s{T0}, 15")
            a(f"s_add_u32 m0, s100, {WB + b*65536 + i*4096}")
            a(f"s_lshl_b32 s{T0}, s{T0}, 15")
            r = WOB if b else WOA
            a(f"buffer_load_dwordx4 v27, s[{r}:{r+3}], s{T0} offen lds")
            vm.op("wo")
    for s in range(3):
        issue(s)
        stamp(a, 2 + s)
        if s == 0:
            srd(a, WOA, 8, 0x80000)
            srd(a, WOB, 14, 0x80000)
        if PRO == s + 1:
            vm.wait("st0"); stamp(a, 5); a("s_barrier")
    GR = {4: [(1, i) for i in range(8, 16)],
          5: [(1, i) for i in range(8)] + [(0, 14), (0, 15)],
          6: [(0, i) for i in range(3, 14)],
          7: [(0, i) for i in range(3)]}
    for s in range(8):
        if s < 7: vm.wait(f"st{s+1}")
        if s in (0, 4, 6): stamp(a, {0: 6, 4: 7, 6: 8}[s])
        a("s_barrier")
        if s + 3 <= 7: issue(s + 3)
        if s in GR: wo_issue(GR[s])
    stamp(a, 9)
    srd(a, DBG, 20, 256)
    srd(a, WS, 22, 0x10000000)
    a(f"""
    s_lshr_b32 s{T0}, s{RT2}, 1
    s_lshl_b32 s{T1}, s{T0}, 4
    v_mov_b32 v28, s{T1}
    s_lshl_b32 s{T1}, s{T0}, 8
    s_add_u32 s{T1}, s{T1}, {F_OFF}
    v_and_b32 v29, 15, v0
    v_lshl_add_u32 v29, v29, 2, s{T1}
    s_cmp_eq_u32 s3, 0
    s_cbranch_scc0 L_NOINIT
    s_mov_b32 s{T2}, {SPIN}
    L_INIT:
    buffer_load_dword v30, v28, s[{DBG}:{DBG+3}], 0 offen sc1
    s_sub_u32 s{T2}, s{T2}, 1
    s_waitcnt vmcnt(0)
    v_cmp_gt_u32 vcc, 16, v30
    s_cmp_eq_u32 s{T2}, 0
    s_cbranch_scc1 L_NOINIT
    s_cbranch_vccnz L_INIT
    L_NOINIT:
    s_waitcnt vmcnt(0)
    """)
    a("s_branch K_P2")
    a("K_CONS:")
    a(f"s_sub_u32 s101, s3, 4            ; cw")
    if CODEPF:
        a("""
        s_getpc_b64 s[56:57]
        v_lshlrev_b32 v1, 7, v0
        s_lshl_b32 s58, s101, 13
        v_add_u32 v1, s58, v1
        s_cmp_ge_u32 s101, 2
        s_cbranch_scc1 L_NOPF
        global_load_dword v255, v1, s[56:57]
        L_NOPF:
        """)
    QA, KA, VA = 16, 48, 84
    FA = (120, 168)
    CCUR, CPREV, CPF, PM, ONES = 216, 220, 224, 228, 232
    a(f"""
    s_lshl_b32 s{T0}, s{RT}, 7
    s_lshl_b32 s{T1}, s{CG}, 3
    s_add_u32 s{T0}, s{T0}, s{T1}
    s_lshl_b32 s{T1}, s101, 1
    s_add_u32 s{T0}, s{T0}, s{T1}
    v_lshrrev_b32 v3, 5, v0
    v_add_u32 v3, s{T0}, v3
    v_and_b32 v4, 31, v0
    v_lshlrev_b32 v28, 5, v4
    v_lshl_add_u32 v27, v3, 10, v28
    v_lshlrev_b32 v29, 2, v3
    v_add_u32 v29, {G_OFF}, v29
    s_lshl_b32 s{T0}, s{RT}, 8
    s_lshl_b32 s{T1}, s{CG}, 2
    s_add_u32 s{T0}, s{T0}, s{T1}
    s_add_u32 s{T0}, s{T0}, {F_OFF}
    v_mov_b32 v14, s{T0}
    v_mov_b32 v30, 0
    v_mov_b32 v244, {CNT}
    s_waitcnt lgkmcnt(0)
    """)
    srd(a, X, 4, 0x200000)
    srd(a, G, 16, 1024)
    srd(a, WS, 22, 0x10000000)
    a(f"""
    buffer_load_dwordx4 v[32:35], v27, s[{X}:{X+3}], 0 offen
    buffer_load_dwordx4 v[36:39], v27, s[{X}:{X+3}], 0 offen offset:16
    buffer_load_dwordx4 v[40:43], v28, s[{G}:{G+3}], 0 offen
    buffer_load_dwordx4 v[44:47], v28, s[{G}:{G+3}], 0 offen offset:16
    s_cmp_eq_u32 s101, 0
    s_cbranch_scc0 L_NOCLR
    s_mov_b64 exec, 1
    buffer_store_dword v30, v14, s[{WS}:{WS+3}], 0 offen sc1
    ds_write_b32 v244, v30
    s_mov_b64 exec, -1
    L_NOCLR:
    """)
    srd(a, DBG, 20, 256)
    if TOUCH:
        a(f"""
        s_cmp_eq_u32 s101, 1
        s_cbranch_scc0 L_NOTOUCH
        s_mov_b64 exec, 1
        s_lshl_b32 s{T0}, s{RT2}, 16
        v_mov_b32 v254, s{T0}
        s_lshl_b32 s{T0}, s{RT2}, 17
        v_mov_b32 v253, s{T0}
        global_load_dword v255, v30, s[8:9]
        global_load_dword v255, v30, s[14:15]
        global_load_dword v255, v254, s[18:19]
        global_load_dword v255, v253, s[22:23]
        s_mov_b64 exec, -1
        L_NOTOUCH:
        """)
    a(f"""
    v_lshrrev_b32 v1, 4, v0          ; g
    v_and_b32 v2, 15, v0             ; n
    v_lshrrev_b32 v3, 1, v2
    v_xor_b32 v3, v1, v3
    v_lshlrev_b32 v3, 4, v3
    v_lshl_add_u32 v6, v2, 7, v3
    v_xor_b32 v7, 64, v6
    v_add_u32 v4, {SLOTADDR[0]}, v6
    v_add_u32 v5, {SLOTADDR[0]}, v7
    v_add_u32 v8, {SLOTADDR[2]}, v6
    v_add_u32 v9, {SLOTADDR[2]}, v7
    v_lshrrev_b32 v3, 2, v2          ; r
    v_lshl_add_u32 v11, v1, 3, v3
    v_lshlrev_b32 v11, 7, v11
    v_lshrrev_b32 v3, 1, v3
    v_and_b32 v15, 1, v1
    v_lshl_or_b32 v3, v15, 1, v3     ; f
    v_xor_b32 v3, s101, v3
    v_lshl_add_u32 v11, v3, 5, v11
    v_and_b32 v3, 3, v2
    v_lshl_add_u32 v11, v3, 3, v11
    v_add_u32 v11, {XB}, v11
    v_add_u32 v10, {SLOTADDR[0]}, v11
    v_add_u32 v12, {SLOTADDR[2]}, v11
    s_lshl_b32 s{T0}, s{HG}, 2
    s_add_u32 s{T0}, s{T0}, s101     ; h
    s_lshl_b32 s{T1}, s{RT}, 18
    s_lshl_b32 s{T2}, s{BR}, 14
    s_add_u32 s{T1}, s{T1}, s{T2}
    s_lshr_b32 s{T2}, s{T0}, 1
    s_lshl_b32 s{T2}, s{T2}, 10
    s_add_u32 s{T1}, s{T1}, s{T2}
    s_and_b32 s{T2}, s{T0}, 1
    s_lshl_b32 s{T2}, s{T2}, 9
    s_add_u32 s{T1}, s{T1}, s{T2}
    v_and_b32 v3, 1, v1
    v_lshlrev_b32 v13, 15, v3
    v_lshrrev_b32 v3, 1, v1
    v_lshl_add_u32 v13, v3, 8, v13
    v_lshl_add_u32 v13, v2, 4, v13
    v_add_u32 v13, s{T1}, v13
    s_mov_b32 s{T2}, {NEG}
    v_lshlrev_b32 v3, 2, v1
    v_sub_u32 v3, v2, v3
    """)
    for i in range(4):
        a(f"""
        v_subrev_u32 v16, {i}, v3
        v_and_b32 v15, 1, v16
        v_cmp_eq_u32 s[40:41], 0, v15
        v_cmp_le_i32 s[42:43], 0, v16
        s_nop 1
        s_and_b64 s[44:45], s[40:41], s[42:43]
        s_andn2_b64 s[46:47], s[40:41], s[42:43]
        v_mov_b32 v15, s{T2}
        v_cndmask_b32 v{CCUR+i}, v15, 0, s[44:45]
        v_cndmask_b32 v{CPREV+i}, v15, 0, s[46:47]
        v_mov_b32 v16, {"0xffff" if i % 2 == 0 else "0xffff0000"}
        v_cndmask_b32 v{236+i}, 0, v16, s[46:47]
        v_cndmask_b32 v{240+i}, 0, v16, s[44:45]
        """)
    a(f"""
    v_or_b32 v{PM}, v236, v237
    v_or_b32 v{PM+1}, v238, v239
    v_or_b32 v{PM+2}, v240, v241
    v_or_b32 v{PM+3}, v242, v243
    s_cmp_eq_u32 s{RT}, 0
    s_cselect_b64 s[44:45], -1, 0
    v_mov_b32 v15, s{T2}
    """)
    for i in range(4):
        a(f"v_cndmask_b32 v{CPF+i}, v{CPREV+i}, v15, s[44:45]")
        a(f"v_mov_b32 v{ONES+i}, 0x3f803f80")
    a("s_waitcnt vmcnt(0)" if False else "")
    a("v_mov_b32 v60, 0\nv_mov_b32 v61, 0")
    a("""
    s_cmp_eq_u32 s101, 0
    s_cbranch_scc1 L_GW1
    s_cmp_eq_u32 s101, 1
    s_cbranch_scc1 L_GW4
    s_waitcnt vmcnt(0)
    L_GW1:
    s_waitcnt vmcnt(1)
    L_GW4:
    s_waitcnt vmcnt(%d)
    """ % (4 if TOUCH else 0))
    for j in range(8):
        a(f"""
        v_lshlrev_b32 v50, 16, v{32+j}
        v_and_b32 v51, 0xffff0000, v{32+j}
        v_lshlrev_b32 v52, 16, v{40+j}
        v_and_b32 v53, 0xffff0000, v{40+j}
        v_mul_f32 v50, v50, v52
        v_mul_f32 v51, v51, v53
        v_cvt_pk_bf16_f32 v50, v50, v51
        v_lshlrev_b32 v52, 16, v50
        v_and_b32 v53, 0xffff0000, v50
        v_add_f32 v60, v60, v52
        v_add_f32 v61, v61, v53
        """)
    a("v_add_f32 v60, v60, v61")
    for rot in (8, 4, 2, 1):
        a("s_nop 1")
        a(f"v_add_f32_dpp v60, v60, v60 row_ror:{rot} row_mask:0xf bank_mask:0xf")
    a(f"""
    v_mov_b32 v61, v60
    s_nop 1
    v_permlane16_swap_b32 v60, v61
    s_nop 1
    v_add_f32 v60, v60, v61
    v_cvt_pk_bf16_f32 v60, v60, v60
    v_lshlrev_b32 v60, 16, v60
    v_mul_f32 v60, 0xbfb8aa3b, v60
    v_exp_f32 v60, v60
    s_nop 0
    v_add_f32 v60, 1.0, v60
    v_rcp_f32 v60, v60
    s_nop 0
    v_cvt_pk_bf16_f32 v60, v60, v60
    v_lshlrev_b32 v60, 16, v60
    s_mov_b32 exec_lo, 1
    s_mov_b32 exec_hi, 1
    buffer_store_dword v60, v29, s[{WS}:{WS+3}], 0 offen sc1
    s_mov_b64 exec, -1
    s_waitcnt lgkmcnt(0)
    """)
    def reads(s, sub, fs):
        slot = s % 3
        base = FA[fs]
        r = []
        for sec in range(3):
            for half in range(2):
                r.append(f"ds_read_b64_tr_b16 {vr(base+36+4*sec+2*half, 2)}, v{10+slot} offset:{sec*8192 + sub*4096 + half*512}")
        for T in range(9):
            r.append(f"ds_read_b128 {vr(base+4*T, 4)}, v{4+2*slot+sub} offset:{T*2048}")
        return r
    def mfmas(fs, first):
        base = FA[fs]
        m = []
        Xr = lambda T: vr(base + 4*T, 4)
        Wr = lambda sec: vr(base + 36 + 4*sec, 4)
        for T in range(9):
            d = vr(KA + 4*T, 4); m.append(f"v_mfma_f32_16x16x32_bf16 {d}, {Wr(1)}, {Xr(T)}, {0 if first else d}")
            d = vr(VA + 4*T, 4); m.append(f"v_mfma_f32_16x16x32_bf16 {d}, {Xr(T)}, {Wr(2)}, {0 if first else d}")
            if T >= 1:
                d = vr(QA + 4*(T-1), 4); m.append(f"v_mfma_f32_16x16x32_bf16 {d}, {Wr(0)}, {Xr(T)}, {0 if first else d}")
        return m
    def interleave(m, r):
        for i, x in enumerate(m):
            a(x)
            if i < len(r): a(r[i])
    stamp(a, 1)
    a("s_barrier")
    stamp(a, 2)
    for x in reads(0, 0, 0): a(x)
    a("s_waitcnt lgkmcnt(0)")
    for s in range(8):
        interleave(mfmas(0, s == 0), reads(s, 1, 1))
        a("s_waitcnt lgkmcnt(0)")
        a("s_barrier")
        if s in (0, 1, 4, 6): stamp(a, {0: 3, 1: 4, 4: 5, 6: 6}[s])
        if s == 2:
            a(f"""
            s_cmp_eq_u32 s101, 0
            s_cbranch_scc0 L_NOARR
            s_lshl_b32 s{T0}, s{RT}, 4
            v_mov_b32 v246, s{T0}
            v_mov_b32 v15, 1
            s_mov_b64 exec, 1
            s_waitcnt vmcnt(0)
            buffer_atomic_add v15, v246, s[{DBG}:{DBG+3}], 0 offen sc1
            s_mov_b64 exec, -1
            L_NOARR:
            """)
        interleave(mfmas(1, False), reads(s + 1, 0, 0) if s < 7 else [])
        if s < 7: a("s_waitcnt lgkmcnt(0)")
    stamp(a, 7)
    QP, KP, VP = 120, 136, 154
    L, M = 80, 96
    a("s_nop 7")
    for T in range(9):
        a(f"v_cvt_pk_bf16_f32 v{KP+2*T}, v{KA+4*T}, v{KA+4*T+1}")
        a(f"v_cvt_pk_bf16_f32 v{KP+2*T+1}, v{KA+4*T+2}, v{KA+4*T+3}")
        a(f"v_cvt_pk_bf16_f32 v{VP+2*T}, v{VA+4*T}, v{VA+4*T+1}")
        a(f"v_cvt_pk_bf16_f32 v{VP+2*T+1}, v{VA+4*T+2}, v{VA+4*T+3}")
        if T >= 1:
            a(f"v_cvt_pk_bf16_f32 v{QP+2*(T-1)}, v{QA+4*(T-1)}, v{QA+4*(T-1)+1}")
            a(f"v_cvt_pk_bf16_f32 v{QP+2*(T-1)+1}, v{QA+4*(T-1)+2}, v{QA+4*(T-1)+3}")
    a("s_nop 1")
    SC = lambda T: 16 + 8*(T-1)
    for T in range(1, 9):
        q = vr(QP + 2*(T-1), 2)
        a(f"v_mfma_f32_16x16x16_bf16 {vr(SC(T),4)}, {vr(KP+2*T,2)}, {q}, {vr(CCUR,4)}")
        a(f"v_mfma_f32_16x16x16_bf16 {vr(SC(T)+4,4)}, {vr(KP+2*(T-1),2)}, {q}, {vr(CPF if T == 1 else CPREV,4)}")
    a("s_nop 7")
    for T in range(1, 9):
        s0 = SC(T); l = L + 2*(T-1)
        a(f"v_max3_f32 v{l}, v{s0}, v{s0+1}, v{s0+4}")
        a(f"v_max3_f32 v{l+1}, v{s0+2}, v{s0+3}, v{s0+6}")
        a(f"v_max_f32 v{l}, v{l}, v{s0+5}")
        a(f"v_max_f32 v{l+1}, v{l+1}, v{s0+7}")
        a(f"v_max_f32 v{M+T-1}, v{l}, v{l+1}")
    a(f"s_mov_b32 s{T2}, {CSC}")
    B = [(M, M+1, M+2, M+3), (M+4, M+5, M+6, M+7)]
    a("s_nop 0")
    for (p, q, r, s) in B:
        a(f"v_permlane32_swap_b32 v{p}, v{q}")
        a(f"v_permlane32_swap_b32 v{r}, v{s}")
    a("s_nop 0")
    for (p, q, r, s) in B:
        a(f"v_max_f32 v{p}, v{p}, v{q}")
        a(f"v_max_f32 v{r}, v{r}, v{s}")
    a("s_nop 1")
    for (p, q, r, s) in B: a(f"v_permlane16_swap_b32 v{p}, v{r}")
    a("s_nop 1")
    for (p, q, r, s) in B: a(f"v_max_f32 v{p}, v{p}, v{r}")
    for (p, q, r, s) in B: a(f"v_mul_f32 v{p}, s{T2}, v{p}")
    for (p, q, r, s) in B: a(f"v_mov_b32 v{r}, v{p}")
    a("s_nop 1")
    for (p, q, r, s) in B: a(f"v_permlane16_swap_b32 v{p}, v{r}")
    a("s_nop 1")
    for (p, q, r, s) in B:
        a(f"v_mov_b32 v{q}, v{p}")
        a(f"v_mov_b32 v{s}, v{r}")
    a("s_nop 1")
    for (p, q, r, s) in B:
        a(f"v_permlane32_swap_b32 v{p}, v{q}")
        a(f"v_permlane32_swap_b32 v{r}, v{s}")
    a("s_nop 1")
    for T in range(1, 9):
        l = L + 2*(T-1)
        a(f"v_fma_f32 v{l}, v{l}, s{T2}, -v{M+T-1}")
        a(f"v_fma_f32 v{l+1}, v{l+1}, s{T2}, -v{M+T-1}")
    for T in range(1, 9):
        l = L + 2*(T-1)
        a(f"v_exp_f32 v{l}, v{l}")
        a(f"v_exp_f32 v{l+1}, v{l+1}")
    a("s_nop 0")
    for T in range(1, 9):
        l = L + 2*(T-1)
        a(f"v_cvt_pk_bf16_f32 v{l}, v{l}, v{l}")
        a(f"v_cvt_pk_bf16_f32 v{l+1}, v{l+1}, v{l+1}")
    PR = lambda T: 16 + 4*(T-1)
    for T in range(1, 9):
        l = L + 2*(T-1); p = PR(T)
        a(f"v_and_b32 v{p}, v{l}, v{PM}")
        a(f"v_and_b32 v{p+1}, v{l+1}, v{PM+1}")
        a(f"v_and_b32 v{p+2}, v{l}, v{PM+2}")
        a(f"v_and_b32 v{p+3}, v{l+1}, v{PM+3}")
    a("s_nop 1")
    OO = lambda T: 48 + 4*(T-1)
    SUM = lambda T: 176 + 4*(T-1)
    for T in range(1, 9):
        a(f"v_mfma_f32_16x16x32_bf16 {vr(SUM(T),4)}, {vr(ONES,4)}, {vr(PR(T),4)}, 0")
        a(f"v_mfma_f32_16x16x32_bf16 {vr(OO(T),4)}, {vr(VP+2*(T-1),4)}, {vr(PR(T),4)}, 0")
    a("s_nop 7")
    for T in range(1, 9): a(f"v_rcp_f32 v{M+T-1}, v{SUM(T)}")
    a("s_nop 0")
    for T in range(1, 9):
        o = OO(T)
        for i in range(4): a(f"v_mul_f32 v{o+i}, v{o+i}, v{M+T-1}")
    for i in range(4):
        ob = 80 + 4*i
        o0, o1 = OO(2*i+1), OO(2*i+2)
        a(f"v_cvt_pk_bf16_f32 v{ob}, v{o0}, v{o0+1}")
        a(f"v_cvt_pk_bf16_f32 v{ob+1}, v{o0+2}, v{o0+3}")
        a(f"v_cvt_pk_bf16_f32 v{ob+2}, v{o1}, v{o1+1}")
        a(f"v_cvt_pk_bf16_f32 v{ob+3}, v{o1+2}, v{o1+3}")
    a("s_nop 1")
    for i in range(4):
        ob = 80 + 4*i
        a(f"v_permlane16_swap_b32 v{ob}, v{ob+2}")
        a(f"v_permlane16_swap_b32 v{ob+1}, v{ob+3}")
        a(f"s_mov_b32 s{T0}, {65536*i}")
        a(f"buffer_store_dwordx4 {vr(ob,4)}, v13, s[{WS}:{WS+3}], s{T0} offen sc1")
    stamp(a, 8)
    a(f"""
    v_mov_b32 v15, 1
    s_mov_b64 exec, 1
    s_waitcnt vmcnt(0)
    ds_add_rtn_u32 v246, v244, v15
    s_waitcnt lgkmcnt(0)
    v_cmp_eq_u32 vcc, 3, v246
    s_cbranch_vccz L_NOFLAG
    buffer_store_dword v15, v14, s[{WS}:{WS+3}], 0 offen sc1
    L_NOFLAG:
    s_mov_b64 exec, -1
    """)
    stamp(a, 9)
    a("K_P2:")
    ACC = 24
    OF = 40
    NOB = min(OINF, 16)
    WF = (OF + 4*NOB, OF + 4*NOB + 16)
    WP = WF[1] + 16
    assert WP + 16*PRE <= 256, WP + 16*PRE
    NSTR = 16 - PRE
    a(f"""
    s_lshr_b32 s{BR}, s3, 2          ; b
    s_and_b32 s{HG}, s3, 3           ; rq
    s_lshl_b32 s{T0}, s{RT2}, 2
    s_add_u32 s{T0}, s{T0}, s{HG}    ; t
    s_lshl_b32 s{T1}, s{T0}, 1
    s_add_u32 s{T1}, s{T1}, s{BR}
    s_lshl_b32 s{T1}, s{T1}, 14
    v_lshl_add_u32 v18, v0, 4, s{T1} ; o offset
    v_lshrrev_b32 v1, 4, v0
    v_and_b32 v2, 15, v0
    s_lshl_b32 s{T1}, s{T0}, 4
    v_add_u32 v3, s{T1}, v2          ; token
    v_lshlrev_b32 v19, 2, v3
    v_add_u32 v19, {G_OFF}, v19
    s_lshl_b32 s{T1}, s{CT}, 7
    s_lshl_b32 s{T2}, s{BR}, 6
    s_add_u32 s{T1}, s{T1}, s{T2}
    v_lshl_add_u32 v20, v3, 10, s{T1}
    v_and_b32 v3, 1, v1
    v_lshl_add_u32 v20, v3, 5, v20
    v_lshrrev_b32 v3, 1, v1
    v_lshl_add_u32 v20, v3, 4, v20
    v_lshrrev_b32 v3, 2, v2
    v_lshl_add_u32 v4, v1, 3, v3
    v_lshlrev_b32 v4, 7, v4
    v_lshrrev_b32 v3, 1, v3
    v_and_b32 v5, 1, v1
    v_lshl_or_b32 v3, v5, 1, v3
    v_and_b32 v5, 3, v2
    v_lshl_add_u32 v4, v5, 3, v4
    s_lshl_b32 s{T1}, s{BR}, 16
    s_add_u32 s{T1}, s{T1}, {WB}
    v_add_u32 v4, s{T1}, v4
    """)
    for j in range(4):
        a(f"v_xor_b32 v5, {j}, v3")
        a(f"v_lshl_add_u32 v{8+j}, v5, 5, v4")
    a(f"""
    s_lshl_b32 s{T1}, s3, 11
    v_lshl_add_u32 v12, v0, 4, s{T1}
    v_xor_b32 v13, 8192, v12
    """)
    srd(a, G, 18, 0x200000)
    a("s_barrier")
    stamp(a, 10)
    def wreads(i, base):
        r = []
        for j in range(4):
            for half in range(2):
                r.append(f"ds_read_b64_tr_b16 {vr(base+4*j+2*half,2)}, v{8+j} offset:{i*4096+half*512}")
        return r
    a("s_cmp_eq_u32 s3, 0")
    a("s_cbranch_scc0 L_NOPOLL0")
    a(f"buffer_load_dword v30, v29, s[{WS}:{WS+3}], 0 offen sc1")
    a("L_NOPOLL0:")
    for p in range(PRE):
        for x in wreads(NSTR + p, WP + 16*p): a(x)
    for x in wreads(0, WF[0]): a(x)
    a(f"""
    s_cmp_eq_u32 s3, 0
    s_cbranch_scc0 L_GO
    s_mov_b32 s{T2}, {SPIN}
    L_POLL:
    s_waitcnt vmcnt(0)
    v_cmp_ne_u32 vcc, 1, v30
    s_sub_u32 s{T2}, s{T2}, 1
    s_cbranch_vccz L_GO
    s_cmp_eq_u32 s{T2}, 0
    s_cbranch_scc1 L_GO
    buffer_load_dword v30, v29, s[{WS}:{WS+3}], 0 offen sc1
    s_branch L_POLL
    L_GO:
    s_barrier
    """)
    stamp(a, 11)
    vm = VM(a)
    def oload(i):
        a(f"s_add_u32 s{T0}, s{ROT2S}, {i}")
        a(f"s_and_b32 s{T0}, s{T0}, 15")
        a(f"s_lshl_b32 s{T0}, s{T0}, 10")
        a(f"buffer_load_dwordx4 {vr(OF+4*(i % NOB),4)}, v18, s[{WS}:{WS+3}], s{T0} offen sc1"); vm.op(f"o{i}")
    for i in range(NOB): oload(i)
    if NOB == 16:
        a(f"buffer_load_dword v21, v19, s[{WS}:{WS+3}], 0 offen sc1"); vm.op("g")
    for i in range(16):
        r = wreads(i + 1, WF[(i+1) & 1]) if i + 1 < NSTR else []
        for x in r: a(x)
        if i <= NSTR: a(f"s_waitcnt lgkmcnt({len(r)})")
        vm.wait(f"o{i}")
        if i == 0: stamp(a, 12)
        wb = WF[i & 1] if i < NSTR else WP + 16*(i - NSTR)
        for j in range(4):
            d = vr(ACC + 4*j, 4)
            a(f"v_mfma_f32_16x16x32_bf16 {d}, {vr(wb+4*j,4)}, {vr(OF+4*(i % NOB),4)}, {0 if i == 0 else d}")
        if i + NOB < 16: oload(i + NOB)
        if i + NOB == 16 and NOB < 16:
            a(f"buffer_load_dword v21, v19, s[{WS}:{WS+3}], 0 offen sc1"); vm.op("g")
    stamp(a, 13)
    a("s_nop 7")
    a(f"s_cmp_eq_u32 s{BR}, 0")
    a("s_cbranch_scc0 K2_B1")
    for b in range(2):
        if b == 1: a("K2_B1:")
        give = ACC + 8*(1-b); keep = ACC + 8*b
        a(f"ds_write_b128 v12, {vr(give,4)}")
        a(f"ds_write_b128 v12, {vr(give+4,4)} offset:1024")
        a("s_waitcnt vmcnt(0)")
        a("v_sub_f32 v22, 1.0, v21")
        a("v_cvt_pk_bf16_f32 v22, v22, v22")
        a("v_lshlrev_b32 v22, 16, v22")
        ck, cr = (21, 22) if b == 0 else (22, 21)
        for i in range(8): a(f"v_mul_f32 v{keep+i}, v{keep+i}, v{ck}")
        a("s_waitcnt lgkmcnt(0)")
        a("s_barrier")
        a(f"ds_read_b128 v[48:51], v13")
        a(f"ds_read_b128 v[52:55], v13 offset:1024")
        a("s_waitcnt lgkmcnt(1)")
        for i in range(4): a(f"v_fmac_f32 v{keep+i}, v{48+i}, v{cr}")
        a("s_waitcnt lgkmcnt(0)")
        for i in range(4, 8): a(f"v_fmac_f32 v{keep+i}, v{48+i}, v{cr}")
        for i in range(4): a(f"v_cvt_pk_bf16_f32 v{56+i}, v{keep+2*i}, v{keep+2*i+1}")
        a("s_nop 1")
        a("v_permlane16_swap_b32 v56, v58")
        a("v_permlane16_swap_b32 v57, v59")
        a(f"buffer_store_dwordx4 v[56:59], v20, s[{G}:{G+3}], 0 offen {OUTMOD}")
        if b == 0: a("s_branch K2_FIN")
    a("K2_FIN:")
    stamp(a, 14)
    if STAMPS:
        a("s_waitcnt vmcnt(0)")
        stamp(a, 15)
        store_stamps(a)
    a("K_END:")
    a("s_endpgm")
    if CODEPF:
        a(".fill 4096, 4, 0xbf800000")

a = Asm()
a.lines.append(HEADER.rstrip())
a.lines.append(f"; @launch grid=(256,1,1) block=(512,1,1) lds={LDS_BYTES}")
a('.amdgcn_target "amdgcn-amd-amdhsa--gfx950"')
a(".text")
gen(a, NAME + "_kernel")
a('.section .rodata,"a"')
a(".p2align 6")
a(descriptor(NAME + "_kernel", 256))
open(OUT, "w").write(a.text())
```

```python
import sys
from asmlib import *

def opt(name, default):
    for x in sys.argv:
        if x.startswith(f"--{name}="): return int(x.split("=")[1])
    return default
def sopt(name, default):
    for x in sys.argv:
        if x.startswith(f"--{name}="): return x.split("=")[1]
    return default
STAMPS = "--stamps" in sys.argv
OUT = [a for a in sys.argv[1:] if not a.startswith("--")][0]
ROT = opt("rot", 1)
PRO = opt("pro", 2)
XFIRST = opt("xfirst", 1)
CODEPF = opt("codepf", 120)
TOUCH = opt("touch", 1)
PRE = opt("pre", 7)
OINF = opt("oinf", 16)
OUTMOD = sopt("outmod", "")
ROT2 = opt("rot2", 1)
SMODE = opt("smode", 0)
C0POS = opt("c0pos", 0)
ALIGN = opt("align", 1)
NOWO = opt("nowo", 0)

STAMP_OFF = 128 << 20
G_OFF = 8 << 20
F_OFF = 9 << 20
SLOT = 43008
SLOTADDR = {1: 0, 0: SLOT, 2: 2 * SLOT}
XB = 18432
WB = 31744
CNT = 162816
LDS_BYTES = 163840
NEG = 0xF149F2CA
CSC = 0x3EB8AA3B
SPIN = 1 << 18

class VM:
    def __init__(self, a): self.a = a; self.ops = []
    def op(self, tag): self.ops.append(tag)
    def wait(self, tag):
        idx = max(i for i, t in enumerate(self.ops) if t == tag)
        n = len(self.ops) - 1 - idx
        assert n < 64
        self.a(f"s_waitcnt vmcnt({n})")

def stamp(a, i):
    if STAMPS: a(f"s_memtime s[{60+2*i}:{61+2*i}]")

def store_stamps(a):
    if not STAMPS: return
    a("s_memrealtime s[94:95]")
    a("s_waitcnt lgkmcnt(0)")
    a(f"""
    s_lshl_b32 s58, s2, 3
    s_add_u32 s58, s58, s3
    s_lshl_b32 s58, s58, 8
    s_add_u32 s58, s58, {STAMP_OFF}
    s_add_u32 s56, s22, s58
    s_addc_u32 s57, s23, 0
    v_mov_b32 v2, 0
    """)
    for i in range(18):
        a(f"v_mov_b32 v4, s{60+2*i}")
        a(f"v_mov_b32 v5, s{61+2*i}")
        a(f"global_store_dwordx2 v2, v[4:5], s[56:57] offset:{8*i}")
    a("s_waitcnt vmcnt(0)")

def srd(a, d, lo, size):
    a(f"s_mov_b32 s{d}, s{lo}\ns_mov_b32 s{d+1}, s{lo+1}\ns_mov_b32 s{d+2}, {size}\ns_mov_b32 s{d+3}, 0x20000")

X, W, WS, G, WOA, WOB, DBG = 24, 28, 32, 36, 40, 44, 48
RT, CG, BR, HG, RT2, CT, ROT1S, ROT2S = 52, 53, 54, 55, 96, 97, 98, 99
T0, T1, T2, T3 = 56, 57, 58, 59

def p2_decode(a):
    a(f"""
    s_lshr_b32 s{T1}, s2, 3
    s_and_b32 s{RT2}, s{T1}, 3
    s_lshr_b32 s{CT}, s{T1}, 2
    s_lshl1_add_u32 s{ROT2S}, s{RT2}, s{CT}
    s_lshl_b32 s{ROT2S}, s{ROT2S}, 1
    s_and_b32 s{T0}, s2, 7
    s_lshl2_add_u32 s{RT2}, s{T0}, s{RT2}
    """)
    if not ROT2: a(f"s_mov_b32 s{ROT2S}, 0")

def gen(a, name):
    if ALIGN: a(".p2align 12")
    a(kernel_open(name))
    if STAMPS: a("s_memrealtime s[92:93]")
    stamp(a, 0)
    a("s_load_dwordx16 s[4:19], s[0:1], 0\ns_load_dwordx4 s[20:23], s[0:1], 64")
    a("s_cmp_ge_u32 s2, 256")
    a("s_cbranch_scc1 K_END")
    if CODEPF:
        a(f"""
        s_getpc_b64 s[56:57]
        v_lshlrev_b32 v1, 7, v0
        v_cmp_gt_u32 vcc, {CODEPF}, v0
        s_and_saveexec_b64 s[58:59], vcc
        s_cbranch_execz L_NOPF
        global_load_dword v255, v1, s[56:57]
        L_NOPF:
        s_mov_b64 exec, s[58:59]
        """)
    if SMODE == 2: stamp(a, 6)
    a(f"""
    v_lshrrev_b32 v1, 6, v0
    v_and_b32 v0, 63, v0
    s_and_b32 s{T0}, s2, 1
    s_lshr_b32 s{T1}, s2, 3
    v_readfirstlane_b32 s3, v1
    s_and_b32 s{T1}, s{T1}, 7
    s_lshl3_add_u32 s{RT}, s{T0}, s{T1}
    s_lshr_b32 s{T0}, s2, 1
    s_and_b32 s{T0}, s{T0}, 3
    s_lshr_b32 s{T1}, s2, 6
    s_lshl2_add_u32 s{CG}, s{T0}, s{T1}
    s_lshr_b32 s{BR}, s{CG}, 3
    s_and_b32 s{HG}, s{CG}, 7
    s_cmp_ge_u32 s3, 4
    s_cbranch_scc1 K_CONS0
    """)
    CONS0 = f"""
    K_CONS0:
    s_sub_u32 s101, s3, 4
    s_lshl_b32 s{T0}, s{RT}, 6
    s_lshl2_add_u32 s{T0}, s{CG}, s{T0}
    s_add_u32 s{T0}, s{T0}, s101
    v_lshrrev_b32 v3, 5, v0
    v_lshl_add_u32 v3, s{T0}, 1, v3
    v_and_b32 v4, 31, v0
    v_lshlrev_b32 v28, 5, v4
    v_lshl_add_u32 v27, v3, 10, v28
    s_waitcnt lgkmcnt(0)
    global_load_dwordx4 v[32:35], v27, s[4:5]
    global_load_dwordx4 v[36:39], v27, s[4:5] offset:16
    global_load_dwordx4 v[40:43], v28, s[16:17]
    global_load_dwordx4 v[44:47], v28, s[16:17] offset:16
    s_branch K_CONS
    """
    if C0POS == 0:
        a("s_branch K_LOAD")
        a(CONS0)
        a("K_LOAD:")
    if SMODE == 2: stamp(a, 7)
    a(f"""
    v_lshrrev_b32 v1, 3, v0          ; r
    v_and_b32 v2, 7, v0              ; c
    s_and_b32 s{T0}, s3, 1
    s_lshl_b32 s{T1}, s{T0}, 2
    v_lshrrev_b32 v3, 1, v1
    v_add_u32 v3, s{T1}, v3
    v_xor_b32 v3, v2, v3             ; x chunk
    s_lshl_b32 s{T2}, s3, 3
    v_add_u32 v6, s{T2}, v1          ; 8*lw + r
    s_lshl_b32 s{T1}, s{RT}, 7
    s_sub_u32 s{T1}, s{T1}, 16
    v_add_u32 v4, s{T1}, v6          ; row
    v_lshlrev_b32 v3, 4, v3
    v_max_i32 v5, 0, v4
    v_lshl_add_u32 v16, v5, 10, v3
    v_lshl_add_u32 v5, v4, 10, v3
    v_add_u32 v17, 0x8000, v5
    v_add_u32 v18, 0x10000, v5
    v_add_u32 v19, 0x18000, v5
    v_add_u32 v20, 0x20000, v5
    v_and_b32 v3, 2, v1
    s_lshl_b32 s{T1}, s{T0}, 2
    v_or_b32 v3, s{T1}, v3
    v_xor_b32 v3, v2, v3
    v_lshlrev_b32 v7, 4, v3
    v_mul_u32_u24 v4, 3072, v6
    s_lshl_b32 s{T1}, s{HG}, 7
    v_add3_u32 v21, v4, v7, s{T1}
    """)
    if SMODE == 2: stamp(a, 8)
    for i in range(1, 6):
        a(f"v_add_u32 v{21+i}, {(i>>1)*1024 + (i&1)*32*3072}, v21")
    if ROT == 0: a(f"s_mov_b32 s{ROT1S}, 0")
    elif ROT == 1: a(f"s_lshl1_add_u32 s{ROT1S}, s{CG}, s{RT}")
    elif ROT == 3: a(f"s_add_u32 s{ROT1S}, s{CG}, s{RT}\ns_lshl_b32 s{ROT1S}, s{ROT1S}, 1")
    elif ROT == 5:
        a(f"s_add_u32 s{T0}, s{CG}, s{RT}\ns_mul_i32 s{T1}, s{T0}, 86\ns_lshr_b32 s{T1}, s{T1}, 8\ns_mul_i32 s{T1}, s{T1}, 3\ns_sub_u32 s{T0}, s{T0}, s{T1}\ns_mul_i32 s{ROT1S}, s{T0}, 3")
    elif ROT == 2: a(f"s_add_u32 s{ROT1S}, s{CG}, s{RT}\ns_lshl_b32 s{ROT1S}, s{ROT1S}, 2")
    a(f"s_lshl_b32 s100, s3, 10")
    a(f"""
    s_mov_b32 s{X+2}, 0x200000
    s_mov_b32 s{X+3}, 0x20000
    s_mov_b32 s{W+2}, 0x180000
    s_mov_b32 s{W+3}, 0x20000
    s_cmp_eq_u32 s{BR}, 0
    {"s_memtime s[78:79]" if SMODE == 2 and STAMPS else ""}
    s_waitcnt lgkmcnt(0)
    s_mov_b32 s{X}, s4
    s_mov_b32 s{X+1}, s5
    s_cselect_b32 s{W}, s6, s12
    s_cselect_b32 s{W+1}, s7, s13
    """)
    vm = VM(a)
    stamp(a, 1)
    def issue(s):
        slot = SLOTADDR[s % 3]
        a(f"s_add_u32 s{T0}, s{ROT1S}, {s}")
        a(f"s_and_b32 s{T0}, s{T0}, 7")
        a(f"s_mul_i32 s{T1}, s{T0}, {64*3072}")
        a(f"s_lshl_b32 s{T0}, s{T0}, 7")
        l1 = a.label("ex")
        a("s_cmp_ge_u32 s3, 2")
        a(f"s_cbranch_scc1 {l1}")
        a(f"s_add_u32 m0, s100, {slot + 4096*4}")
        a("s_nop 0")
        a(f"buffer_load_dwordx4 v20, s[{X}:{X+3}], s{T0} offen lds")
        l2 = a.label("ex")
        a(f"s_branch {l2}")
        a(f"{l1}:")
        dummy = f"buffer_load_dword v31, v16, s[{X}:{X+3}], s{T0} offen"
        if s in (1, 3):
            l3 = a.label("ex")
            a("s_cmp_eq_u32 s3, 2")
            a(f"s_cbranch_scc1 {l3}")
            a("s_mov_b64 exec, 1")
            if s == 1: a(f"buffer_store_dword v30, v14, s[{WS}:{WS+3}], 0 offen sc1")
            else: a(f"buffer_atomic_add v15, v13, s[{DBG}:{DBG+3}], 0 offen sc1")
            a("s_mov_b64 exec, -1")
            a(f"s_branch {l2}")
            a(f"{l3}:")
        a(dummy)
        a(f"{l2}:")
        vm.op(f"st{s}")
        if XFIRST: order = [("x", i) for i in range(4)] + [("w", i) for i in range(6)]
        else:
            order = []
            for i in range(6):
                order.append(("w", i))
                if i < 4: order.append(("x", i))
        for kind, i in order:
            if kind == "x":
                a(f"s_add_u32 m0, s100, {slot + 4096*i}")
                a("s_nop 0")
                a(f"buffer_load_dwordx4 v{16+i}, s[{X}:{X+3}], s{T0} offen lds")
            else:
                a(f"s_add_u32 m0, s100, {slot + XB + 4096*i}")
                a("s_nop 0")
                a(f"buffer_load_dwordx4 v{21+i}, s[{W}:{W+3}], s{T1} offen lds")
            vm.op(f"st{s}")
    def wo_issue(lst):
        for b, i in lst:
            a(f"s_add_u32 s{T0}, s{ROT2S}, {i}")
            a(f"s_and_b32 s{T0}, s{T0}, 15")
            a(f"s_add_u32 m0, s100, {WB + b*65536 + i*4096}")
            a(f"s_lshl_b32 s{T0}, s{T0}, 15")
            r = WOB if b else WOA
            a(f"buffer_load_dwordx4 v27, s[{r}:{r+3}], s{T0} offen lds")
            vm.op("wo")
    for s in range(3):
        issue(s)
        stamp(a, 2 + s)
        if s == 0:
            srd(a, WOA, 8, 0x80000)
            srd(a, WOB, 14, 0x80000)
            srd(a, DBG, 20, 256)
            srd(a, WS, 22, 0x10000000)
            p2_decode(a)
            a(f"""
            s_lshl_b32 s{T1}, s{CT}, 7
            v_lshl_add_u32 v27, v6, 10, v7
            v_add_u32 v27, s{T1}, v27
            s_lshl_b32 s{T0}, s{RT}, 8
            s_lshl2_add_u32 s{T0}, s{CG}, s{T0}
            s_add_u32 s{T0}, s{T0}, {F_OFF}
            v_mov_b32 v14, s{T0}
            v_mov_b32 v30, 0
            s_lshl_b32 s{T0}, s{RT}, 4
            v_mov_b32 v13, s{T0}
            v_mov_b32 v15, 1
            """)
        if PRO == s + 1:
            vm.wait("st0"); stamp(a, 5); a("s_barrier")
    GR = {4: [(1, i) for i in range(8, 16)],
          5: [(1, i) for i in range(8)] + [(0, 14), (0, 15)],
          6: [(0, i) for i in range(3, 14)],
          7: [(0, i) for i in range(3)]}
    for s in range(8):
        if s < 7: vm.wait(f"st{s+1}")
        if SMODE == 0 and s in (0, 4, 6): stamp(a, {0: 6, 4: 7, 6: 8}[s])
        if SMODE == 1: stamp(a, 6 + s)
        a("s_barrier")
        if s + 3 <= 7: issue(s + 3)
        if s in GR and not NOWO: wo_issue(GR[s])
    if NOWO:
        for s in GR: wo_issue(GR[s])
    if SMODE == 0: stamp(a, 9)
    a(f"""
    s_lshr_b32 s{T0}, s{RT2}, 1
    s_lshl_b32 s{T1}, s{T0}, 4
    v_mov_b32 v28, s{T1}
    s_lshl_b32 s{T1}, s{T0}, 8
    s_add_u32 s{T1}, s{T1}, {F_OFF}
    v_and_b32 v29, 15, v0
    v_lshl_add_u32 v29, v29, 2, s{T1}
    s_cmp_eq_u32 s3, 0
    s_cbranch_scc0 L_NOINIT
    s_mov_b32 s{T2}, {SPIN}
    L_INIT:
    buffer_load_dword v30, v28, s[{DBG}:{DBG+3}], 0 offen sc1
    s_sub_u32 s{T2}, s{T2}, 1
    s_waitcnt vmcnt(0)
    v_cmp_gt_u32 vcc, 16, v30
    s_cmp_eq_u32 s{T2}, 0
    s_cbranch_scc1 L_NOINIT
    s_cbranch_vccnz L_INIT
    L_NOINIT:
    s_waitcnt vmcnt(0)
    """)
    a("s_branch K_P2")
    if C0POS == 1: a(CONS0)
    a("K_CONS:")
    QA, KA, VA = 16, 48, 84
    FA = (120, 168)
    CCUR, CPREV, CPF, PM, ONES = 216, 220, 224, 228, 232
    srd(a, WS, 22, 0x10000000)
    p2_decode(a)
    a(f"""
    s_lshl_b32 s{T0}, s{RT}, 8
    s_lshl2_add_u32 s{T0}, s{CG}, s{T0}
    s_add_u32 s{T0}, s{T0}, {F_OFF}
    v_mov_b32 v14, s{T0}
    v_mov_b32 v30, 0
    v_mov_b32 v244, {CNT}
    v_lshlrev_b32 v29, 2, v3
    v_add_u32 v29, {G_OFF}, v29
    ds_write_b32 v244, v30
    """)
    if TOUCH:
        a(f"""
        s_cmp_eq_u32 s101, 1
        s_cbranch_scc0 L_NOTOUCH
        s_mov_b64 exec, 1
        s_lshl_b32 s{T0}, s{RT2}, 16
        v_mov_b32 v254, s{T0}
        s_lshl_b32 s{T0}, s{RT2}, 17
        v_mov_b32 v253, s{T0}
        global_load_dword v255, v30, s[8:9]
        global_load_dword v255, v30, s[14:15]
        global_load_dword v255, v254, s[18:19]
        global_load_dword v255, v253, s[22:23]
        s_mov_b64 exec, -1
        L_NOTOUCH:
        """)
    a(f"""
    v_lshrrev_b32 v1, 4, v0          ; g
    v_and_b32 v2, 15, v0             ; n
    v_lshrrev_b32 v3, 1, v2
    v_xor_b32 v3, v1, v3
    v_lshlrev_b32 v3, 4, v3
    v_lshl_add_u32 v6, v2, 7, v3
    v_xor_b32 v7, 64, v6
    v_add_u32 v4, {SLOTADDR[0]}, v6
    v_add_u32 v5, {SLOTADDR[0]}, v7
    v_add_u32 v8, {SLOTADDR[2]}, v6
    v_add_u32 v9, {SLOTADDR[2]}, v7
    v_lshrrev_b32 v3, 2, v2          ; r
    v_lshl_add_u32 v11, v1, 3, v3
    v_lshlrev_b32 v11, 7, v11
    v_lshrrev_b32 v3, 1, v3
    v_and_b32 v15, 1, v1
    v_lshl_or_b32 v3, v15, 1, v3     ; f
    v_xor_b32 v3, s101, v3
    v_lshl_add_u32 v11, v3, 5, v11
    v_and_b32 v3, 3, v2
    v_lshl_add_u32 v11, v3, 3, v11
    v_add_u32 v11, {XB}, v11
    v_add_u32 v10, {SLOTADDR[0]}, v11
    v_add_u32 v12, {SLOTADDR[2]}, v11
    s_lshl_b32 s{T0}, s{HG}, 2
    s_add_u32 s{T0}, s{T0}, s101     ; h
    s_lshl_b32 s{T1}, s{RT}, 18
    s_lshl_b32 s{T2}, s{BR}, 14
    s_add_u32 s{T1}, s{T1}, s{T2}
    s_lshr_b32 s{T2}, s{T0}, 1
    s_lshl_b32 s{T2}, s{T2}, 10
    s_add_u32 s{T1}, s{T1}, s{T2}
    s_and_b32 s{T2}, s{T0}, 1
    s_lshl_b32 s{T2}, s{T2}, 9
    s_add_u32 s{T1}, s{T1}, s{T2}
    v_and_b32 v3, 1, v1
    v_lshlrev_b32 v13, 15, v3
    v_lshrrev_b32 v3, 1, v1
    v_lshl_add_u32 v13, v3, 8, v13
    v_lshl_add_u32 v13, v2, 4, v13
    v_add_u32 v13, s{T1}, v13
    s_mov_b32 s{T2}, {NEG}
    v_lshlrev_b32 v3, 2, v1
    v_sub_u32 v3, v2, v3
    """)
    for i in range(4):
        a(f"""
        v_subrev_u32 v16, {i}, v3
        v_and_b32 v15, 1, v16
        v_cmp_eq_u32 s[40:41], 0, v15
        v_cmp_le_i32 s[42:43], 0, v16
        s_nop 1
        s_and_b64 s[44:45], s[40:41], s[42:43]
        s_andn2_b64 s[46:47], s[40:41], s[42:43]
        v_mov_b32 v15, s{T2}
        v_cndmask_b32 v{CCUR+i}, v15, 0, s[44:45]
        v_cndmask_b32 v{CPREV+i}, v15, 0, s[46:47]
        v_mov_b32 v16, {"0xffff" if i % 2 == 0 else "0xffff0000"}
        v_cndmask_b32 v{236+i}, 0, v16, s[46:47]
        v_cndmask_b32 v{240+i}, 0, v16, s[44:45]
        """)
    a(f"""
    v_or_b32 v{PM}, v236, v237
    v_or_b32 v{PM+1}, v238, v239
    v_or_b32 v{PM+2}, v240, v241
    v_or_b32 v{PM+3}, v242, v243
    s_cmp_eq_u32 s{RT}, 0
    s_cselect_b64 s[44:45], -1, 0
    v_mov_b32 v15, s{T2}
    """)
    for i in range(4):
        a(f"v_cndmask_b32 v{CPF+i}, v{CPREV+i}, v15, s[44:45]")
        a(f"v_mov_b32 v{ONES+i}, 0x3f803f80")
    a("s_waitcnt vmcnt(0)" if False else "")
    a("v_mov_b32 v60, 0\nv_mov_b32 v61, 0")
    a("""
    s_cmp_eq_u32 s101, 1
    s_cbranch_scc1 L_GW4
    s_waitcnt vmcnt(0)
    L_GW4:
    s_waitcnt vmcnt(%d)
    """ % (4 if TOUCH else 0))
    for j in range(8):
        a(f"""
        v_lshlrev_b32 v50, 16, v{32+j}
        v_and_b32 v51, 0xffff0000, v{32+j}
        v_lshlrev_b32 v52, 16, v{40+j}
        v_and_b32 v53, 0xffff0000, v{40+j}
        v_mul_f32 v50, v50, v52
        v_mul_f32 v51, v51, v53
        v_cvt_pk_bf16_f32 v50, v50, v51
        v_lshlrev_b32 v52, 16, v50
        v_and_b32 v53, 0xffff0000, v50
        v_add_f32 v60, v60, v52
        v_add_f32 v61, v61, v53
        """)
    a("v_add_f32 v60, v60, v61")
    for rot in (8, 4, 2, 1):
        a("s_nop 1")
        a(f"v_add_f32_dpp v60, v60, v60 row_ror:{rot} row_mask:0xf bank_mask:0xf")
    a(f"""
    v_mov_b32 v61, v60
    s_nop 1
    v_permlane16_swap_b32 v60, v61
    s_nop 1
    v_add_f32 v60, v60, v61
    v_cvt_pk_bf16_f32 v60, v60, v60
    v_lshlrev_b32 v60, 16, v60
    v_mul_f32 v60, 0xbfb8aa3b, v60
    v_exp_f32 v60, v60
    s_nop 0
    v_add_f32 v60, 1.0, v60
    v_rcp_f32 v60, v60
    s_nop 0
    v_cvt_pk_bf16_f32 v60, v60, v60
    v_lshlrev_b32 v60, 16, v60
    s_mov_b32 exec_lo, 1
    s_mov_b32 exec_hi, 1
    buffer_store_dword v60, v29, s[{WS}:{WS+3}], 0 offen sc1
    s_mov_b64 exec, -1
    s_waitcnt lgkmcnt(0)
    """)
    def reads(s, sub, fs):
        slot = s % 3
        base = FA[fs]
        r = []
        for sec in range(3):
            for half in range(2):
                r.append(f"ds_read_b64_tr_b16 {vr(base+36+4*sec+2*half, 2)}, v{10+slot} offset:{sec*8192 + sub*4096 + half*512}")
        for T in range(9):
            r.append(f"ds_read_b128 {vr(base+4*T, 4)}, v{4+2*slot+sub} offset:{T*2048}")
        return r
    def mfmas(fs, first):
        base = FA[fs]
        m = []
        Xr = lambda T: vr(base + 4*T, 4)
        Wr = lambda sec: vr(base + 36 + 4*sec, 4)
        for T in range(9):
            d = vr(KA + 4*T, 4); m.append(f"v_mfma_f32_16x16x32_bf16 {d}, {Wr(1)}, {Xr(T)}, {0 if first else d}")
            d = vr(VA + 4*T, 4); m.append(f"v_mfma_f32_16x16x32_bf16 {d}, {Xr(T)}, {Wr(2)}, {0 if first else d}")
            if T >= 1:
                d = vr(QA + 4*(T-1), 4); m.append(f"v_mfma_f32_16x16x32_bf16 {d}, {Wr(0)}, {Xr(T)}, {0 if first else d}")
        return m
    def interleave(m, r):
        for i, x in enumerate(m):
            a(x)
            if i < len(r): a(r[i])
    stamp(a, 1)
    a("s_barrier")
    stamp(a, 2)
    for x in reads(0, 0, 0): a(x)
    a("s_waitcnt lgkmcnt(0)")
    for s in range(8):
        interleave(mfmas(0, s == 0), reads(s, 1, 1))
        a("s_waitcnt lgkmcnt(0)")
        a("s_barrier")
        if SMODE == 0 and s in (0, 1, 4, 6): stamp(a, {0: 3, 1: 4, 4: 5, 6: 6}[s])
        if SMODE == 1: stamp(a, 3 + s)
        interleave(mfmas(1, False), reads(s + 1, 0, 0) if s < 7 else [])
        if s < 7: a("s_waitcnt lgkmcnt(0)")
    stamp(a, 7 if SMODE == 0 else 11)
    QP, KP, VP = 120, 136, 154
    L, M = 80, 96
    a("s_nop 7")
    for T in range(9):
        a(f"v_cvt_pk_bf16_f32 v{KP+2*T}, v{KA+4*T}, v{KA+4*T+1}")
        a(f"v_cvt_pk_bf16_f32 v{KP+2*T+1}, v{KA+4*T+2}, v{KA+4*T+3}")
        a(f"v_cvt_pk_bf16_f32 v{VP+2*T}, v{VA+4*T}, v{VA+4*T+1}")
        a(f"v_cvt_pk_bf16_f32 v{VP+2*T+1}, v{VA+4*T+2}, v{VA+4*T+3}")
        if T >= 1:
            a(f"v_cvt_pk_bf16_f32 v{QP+2*(T-1)}, v{QA+4*(T-1)}, v{QA+4*(T-1)+1}")
            a(f"v_cvt_pk_bf16_f32 v{QP+2*(T-1)+1}, v{QA+4*(T-1)+2}, v{QA+4*(T-1)+3}")
    a("s_nop 1")
    SC = lambda T: 16 + 8*(T-1)
    for T in range(1, 9):
        q = vr(QP + 2*(T-1), 2)
        a(f"v_mfma_f32_16x16x16_bf16 {vr(SC(T),4)}, {vr(KP+2*T,2)}, {q}, {vr(CCUR,4)}")
        a(f"v_mfma_f32_16x16x16_bf16 {vr(SC(T)+4,4)}, {vr(KP+2*(T-1),2)}, {q}, {vr(CPF if T == 1 else CPREV,4)}")
    a("s_nop 7")
    for T in range(1, 9):
        s0 = SC(T); l = L + 2*(T-1)
        a(f"v_max3_f32 v{l}, v{s0}, v{s0+1}, v{s0+4}")
        a(f"v_max3_f32 v{l+1}, v{s0+2}, v{s0+3}, v{s0+6}")
        a(f"v_max_f32 v{l}, v{l}, v{s0+5}")
        a(f"v_max_f32 v{l+1}, v{l+1}, v{s0+7}")
        a(f"v_max_f32 v{M+T-1}, v{l}, v{l+1}")
    a(f"s_mov_b32 s{T2}, {CSC}")
    B = [(M, M+1, M+2, M+3), (M+4, M+5, M+6, M+7)]
    a("s_nop 0")
    for (p, q, r, s) in B:
        a(f"v_permlane32_swap_b32 v{p}, v{q}")
        a(f"v_permlane32_swap_b32 v{r}, v{s}")
    a("s_nop 0")
    for (p, q, r, s) in B:
        a(f"v_max_f32 v{p}, v{p}, v{q}")
        a(f"v_max_f32 v{r}, v{r}, v{s}")
    a("s_nop 1")
    for (p, q, r, s) in B: a(f"v_permlane16_swap_b32 v{p}, v{r}")
    a("s_nop 1")
    for (p, q, r, s) in B: a(f"v_max_f32 v{p}, v{p}, v{r}")
    for (p, q, r, s) in B: a(f"v_mul_f32 v{p}, s{T2}, v{p}")
    for (p, q, r, s) in B: a(f"v_mov_b32 v{r}, v{p}")
    a("s_nop 1")
    for (p, q, r, s) in B: a(f"v_permlane16_swap_b32 v{p}, v{r}")
    a("s_nop 1")
    for (p, q, r, s) in B:
        a(f"v_mov_b32 v{q}, v{p}")
        a(f"v_mov_b32 v{s}, v{r}")
    a("s_nop 1")
    for (p, q, r, s) in B:
        a(f"v_permlane32_swap_b32 v{p}, v{q}")
        a(f"v_permlane32_swap_b32 v{r}, v{s}")
    a("s_nop 1")
    for T in range(1, 9):
        l = L + 2*(T-1)
        a(f"v_fma_f32 v{l}, v{l}, s{T2}, -v{M+T-1}")
        a(f"v_fma_f32 v{l+1}, v{l+1}, s{T2}, -v{M+T-1}")
    for T in range(1, 9):
        l = L + 2*(T-1)
        a(f"v_exp_f32 v{l}, v{l}")
        a(f"v_exp_f32 v{l+1}, v{l+1}")
    a("s_nop 0")
    for T in range(1, 9):
        l = L + 2*(T-1)
        a(f"v_cvt_pk_bf16_f32 v{l}, v{l}, v{l}")
        a(f"v_cvt_pk_bf16_f32 v{l+1}, v{l+1}, v{l+1}")
    PR = lambda T: 16 + 4*(T-1)
    for T in range(1, 9):
        l = L + 2*(T-1); p = PR(T)
        a(f"v_and_b32 v{p}, v{l}, v{PM}")
        a(f"v_and_b32 v{p+1}, v{l+1}, v{PM+1}")
        a(f"v_and_b32 v{p+2}, v{l}, v{PM+2}")
        a(f"v_and_b32 v{p+3}, v{l+1}, v{PM+3}")
    a("s_nop 1")
    OO = lambda T: 48 + 4*(T-1)
    SUM = lambda T: 176 + 4*(T-1)
    for T in range(1, 9):
        a(f"v_mfma_f32_16x16x32_bf16 {vr(SUM(T),4)}, {vr(ONES,4)}, {vr(PR(T),4)}, 0")
        a(f"v_mfma_f32_16x16x32_bf16 {vr(OO(T),4)}, {vr(VP+2*(T-1),4)}, {vr(PR(T),4)}, 0")
    a("s_nop 7")
    for T in range(1, 9): a(f"v_rcp_f32 v{M+T-1}, v{SUM(T)}")
    a("s_nop 0")
    for T in range(1, 9):
        o = OO(T)
        for i in range(4): a(f"v_mul_f32 v{o+i}, v{o+i}, v{M+T-1}")
    for i in range(4):
        ob = 80 + 4*i
        o0, o1 = OO(2*i+1), OO(2*i+2)
        a(f"v_cvt_pk_bf16_f32 v{ob}, v{o0}, v{o0+1}")
        a(f"v_cvt_pk_bf16_f32 v{ob+1}, v{o0+2}, v{o0+3}")
        a(f"v_cvt_pk_bf16_f32 v{ob+2}, v{o1}, v{o1+1}")
        a(f"v_cvt_pk_bf16_f32 v{ob+3}, v{o1+2}, v{o1+3}")
    a("s_nop 1")
    for i in range(4):
        ob = 80 + 4*i
        a(f"v_permlane16_swap_b32 v{ob}, v{ob+2}")
        a(f"v_permlane16_swap_b32 v{ob+1}, v{ob+3}")
        a(f"s_mov_b32 s{T0}, {65536*i}")
        a(f"buffer_store_dwordx4 {vr(ob,4)}, v13, s[{WS}:{WS+3}], s{T0} offen sc1")
    stamp(a, 8 if SMODE == 0 else 12)
    a(f"""
    v_mov_b32 v15, 1
    s_mov_b64 exec, 1
    s_waitcnt vmcnt(0)
    ds_add_rtn_u32 v246, v244, v15
    s_waitcnt lgkmcnt(0)
    v_cmp_eq_u32 vcc, 3, v246
    s_cbranch_vccz L_NOFLAG
    buffer_store_dword v15, v14, s[{WS}:{WS+3}], 0 offen sc1
    L_NOFLAG:
    s_mov_b64 exec, -1
    """)
    if SMODE == 0: stamp(a, 9)
    a("K_P2:")
    ACC = 24
    OF = 40
    NOB = min(OINF, 16)
    WF = (OF + 4*NOB, OF + 4*NOB + 16)
    WP = WF[1] + 16
    assert WP + 16*PRE <= 256, WP + 16*PRE
    NSTR = 16 - PRE
    a(f"""
    s_lshr_b32 s{BR}, s3, 2          ; b
    s_and_b32 s{HG}, s3, 3           ; rq
    s_lshl_b32 s{T0}, s{RT2}, 2
    s_add_u32 s{T0}, s{T0}, s{HG}    ; t
    s_lshl_b32 s{T1}, s{T0}, 1
    s_add_u32 s{T1}, s{T1}, s{BR}
    s_lshl_b32 s{T1}, s{T1}, 14
    v_lshl_add_u32 v18, v0, 4, s{T1} ; o offset
    v_lshrrev_b32 v1, 4, v0
    v_and_b32 v2, 15, v0
    s_lshl_b32 s{T1}, s{T0}, 4
    v_add_u32 v3, s{T1}, v2          ; token
    v_lshlrev_b32 v19, 2, v3
    v_add_u32 v19, {G_OFF}, v19
    s_lshl_b32 s{T1}, s{CT}, 7
    s_lshl_b32 s{T2}, s{BR}, 6
    s_add_u32 s{T1}, s{T1}, s{T2}
    v_lshl_add_u32 v20, v3, 10, s{T1}
    v_and_b32 v3, 1, v1
    v_lshl_add_u32 v20, v3, 5, v20
    v_lshrrev_b32 v3, 1, v1
    v_lshl_add_u32 v20, v3, 4, v20
    v_lshrrev_b32 v3, 2, v2
    v_lshl_add_u32 v4, v1, 3, v3
    v_lshlrev_b32 v4, 7, v4
    v_lshrrev_b32 v3, 1, v3
    v_and_b32 v5, 1, v1
    v_lshl_or_b32 v3, v5, 1, v3
    v_and_b32 v5, 3, v2
    v_lshl_add_u32 v4, v5, 3, v4
    s_lshl_b32 s{T1}, s{BR}, 16
    s_add_u32 s{T1}, s{T1}, {WB}
    v_add_u32 v4, s{T1}, v4
    """)
    for j in range(4):
        a(f"v_xor_b32 v5, {j}, v3")
        a(f"v_lshl_add_u32 v{8+j}, v5, 5, v4")
    a(f"""
    s_lshl_b32 s{T1}, s3, 11
    v_lshl_add_u32 v12, v0, 4, s{T1}
    v_xor_b32 v13, 8192, v12
    """)
    srd(a, G, 18, 0x200000)
    a("s_barrier")
    if SMODE == 0: stamp(a, 10)
    def wreads(i, base):
        r = []
        for j in range(4):
            for half in range(2):
                r.append(f"ds_read_b64_tr_b16 {vr(base+4*j+2*half,2)}, v{8+j} offset:{i*4096+half*512}")
        return r
    a("s_cmp_eq_u32 s3, 0")
    a("s_cbranch_scc0 L_NOPOLL0")
    a(f"buffer_load_dword v30, v29, s[{WS}:{WS+3}], 0 offen sc1")
    a("L_NOPOLL0:")
    for p in range(PRE):
        for x in wreads(NSTR + p, WP + 16*p): a(x)
    for x in wreads(0, WF[0]): a(x)
    a(f"""
    s_cmp_eq_u32 s3, 0
    s_cbranch_scc0 L_GO
    s_mov_b32 s{T2}, {SPIN}
    L_POLL:
    s_waitcnt vmcnt(0)
    v_cmp_ne_u32 vcc, 1, v30
    s_sub_u32 s{T2}, s{T2}, 1
    s_cbranch_vccz L_GO
    s_cmp_eq_u32 s{T2}, 0
    s_cbranch_scc1 L_GO
    buffer_load_dword v30, v29, s[{WS}:{WS+3}], 0 offen sc1
    s_branch L_POLL
    L_GO:
    s_barrier
    """)
    if SMODE == 0: stamp(a, 11)
    vm = VM(a)
    def oload(i):
        a(f"s_add_u32 s{T0}, s{ROT2S}, {i}")
        a(f"s_and_b32 s{T0}, s{T0}, 15")
        a(f"s_lshl_b32 s{T0}, s{T0}, 10")
        a(f"buffer_load_dwordx4 {vr(OF+4*(i % NOB),4)}, v18, s[{WS}:{WS+3}], s{T0} offen sc1"); vm.op(f"o{i}")
    for i in range(NOB): oload(i)
    if NOB == 16:
        a(f"buffer_load_dword v21, v19, s[{WS}:{WS+3}], 0 offen sc1"); vm.op("g")
    for i in range(16):
        r = wreads(i + 1, WF[(i+1) & 1]) if i + 1 < NSTR else []
        for x in r: a(x)
        if i <= NSTR: a(f"s_waitcnt lgkmcnt({len(r)})")
        vm.wait(f"o{i}")
        if i == 0 and SMODE == 0: stamp(a, 12)
        wb = WF[i & 1] if i < NSTR else WP + 16*(i - NSTR)
        for j in range(4):
            d = vr(ACC + 4*j, 4)
            a(f"v_mfma_f32_16x16x32_bf16 {d}, {vr(wb+4*j,4)}, {vr(OF+4*(i % NOB),4)}, {0 if i == 0 else d}")
        if i + NOB < 16: oload(i + NOB)
        if i + NOB == 16 and NOB < 16:
            a(f"buffer_load_dword v21, v19, s[{WS}:{WS+3}], 0 offen sc1"); vm.op("g")
    if SMODE == 0: stamp(a, 13)
    a("s_nop 7")
    a(f"s_cmp_eq_u32 s{BR}, 0")
    a("s_cbranch_scc0 K2_B1")
    for b in range(2):
        if b == 1: a("K2_B1:")
        give = ACC + 8*(1-b); keep = ACC + 8*b
        a(f"ds_write_b128 v12, {vr(give,4)}")
        a(f"ds_write_b128 v12, {vr(give+4,4)} offset:1024")
        a("s_waitcnt vmcnt(0)")
        a("v_sub_f32 v22, 1.0, v21")
        a("v_cvt_pk_bf16_f32 v22, v22, v22")
        a("v_lshlrev_b32 v22, 16, v22")
        ck, cr = (21, 22) if b == 0 else (22, 21)
        for i in range(8): a(f"v_mul_f32 v{keep+i}, v{keep+i}, v{ck}")
        a("s_waitcnt lgkmcnt(0)")
        a("s_barrier")
        a(f"ds_read_b128 v[48:51], v13")
        a(f"ds_read_b128 v[52:55], v13 offset:1024")
        a("s_waitcnt lgkmcnt(1)")
        for i in range(4): a(f"v_fmac_f32 v{keep+i}, v{48+i}, v{cr}")
        a("s_waitcnt lgkmcnt(0)")
        for i in range(4, 8): a(f"v_fmac_f32 v{keep+i}, v{48+i}, v{cr}")
        for i in range(4): a(f"v_cvt_pk_bf16_f32 v{56+i}, v{keep+2*i}, v{keep+2*i+1}")
        a("s_nop 1")
        a("v_permlane16_swap_b32 v56, v58")
        a("v_permlane16_swap_b32 v57, v59")
        a(f"buffer_store_dwordx4 v[56:59], v20, s[{G}:{G+3}], 0 offen {OUTMOD}")
        if b == 0: a("s_branch K2_FIN")
    a("K2_FIN:")
    stamp(a, 14)
    if STAMPS:
        a("s_waitcnt vmcnt(0)")
        stamp(a, 15)
        store_stamps(a)
    a("K_END:")
    a("s_endpgm")
    if CODEPF:
        a(".fill 512, 4, 0xbf800000")

a = Asm()
a.lines.append(HEADER.rstrip())
a.lines.append(f"; @launch grid=(256,1,1) block=(512,1,1) lds={LDS_BYTES}")
a('.amdgcn_target "amdgcn-amd-amdhsa--gfx950"')
a(".text")
gen(a, NAME + "_kernel")
a('.section .rodata,"a"')
a(".p2align 6")
a(descriptor(NAME + "_kernel", 256))
open(OUT, "w").write(a.text())
```

```python
import sys
from asmlib import *

def opt(name, default):
    for x in sys.argv:
        if x.startswith(f"--{name}="): return int(x.split("=")[1])
    return default
def sopt(name, default):
    for x in sys.argv:
        if x.startswith(f"--{name}="): return x.split("=")[1]
    return default
STAMPS = "--stamps" in sys.argv
OUT = [a for a in sys.argv[1:] if not a.startswith("--")][0]
ROT = opt("rot", 1)
PRO = opt("pro", 2)
XFIRST = opt("xfirst", 1)
CODEPF = opt("codepf", 120)
TOUCH = opt("touch", 1)
PRE = opt("pre", 7)
OINF = opt("oinf", 16)
OUTMOD = sopt("outmod", "")
ROT2 = opt("rot2", 1)
SMODE = opt("smode", 0)
C0POS = opt("c0pos", 0)
ALIGN = opt("align", 1)
NOWO = opt("nowo", 0)

STAMP_OFF = 128 << 20
G_OFF = 8 << 20
F_OFF = 9 << 20
SLOT = 43008
SLOTADDR = {1: 0, 0: SLOT, 2: 2 * SLOT}
XB = 18432
WB = 31744
CNT = 162816
LDS_BYTES = 163840
NEG = 0xF149F2CA
CSC = 0x3EB8AA3B
SPIN = 1 << 18

class VM:
    def __init__(self, a): self.a = a; self.ops = []
    def op(self, tag): self.ops.append(tag)
    def wait(self, tag):
        idx = max(i for i, t in enumerate(self.ops) if t == tag)
        n = len(self.ops) - 1 - idx
        assert n < 64
        self.a(f"s_waitcnt vmcnt({n})")

DBGST = opt("dbgst", -1)
def stamp(a, i):
    if STAMPS: a(f"{'s_memrealtime' if DBGST >= 0 else 's_memtime'} s[{60+2*i}:{61+2*i}]")

def store_stamps(a):
    if not STAMPS: return
    if DBGST >= 0:
        a("s_waitcnt lgkmcnt(0)")
        a(f"s_cmp_eq_u32 s3, {DBGST}")
        a("s_cbranch_scc0 K_END")
        a("s_mov_b64 exec, 1")
        a("s_not_b32 s60, s60")
        a("v_mov_b32 v2, 0")
        for i in range(16):
            a(f"v_mov_b32 v4, s{60+2*i}")
            a(f"global_atomic_umax v2, v4, s[20:21] offset:{4*i} sc1")
        a("s_waitcnt vmcnt(0)")
        return
    a("s_memrealtime s[94:95]")
    a("s_waitcnt lgkmcnt(0)")
    a(f"""
    s_lshl_b32 s58, s2, 3
    s_add_u32 s58, s58, s3
    s_lshl_b32 s58, s58, 8
    s_add_u32 s58, s58, {STAMP_OFF}
    s_add_u32 s56, s22, s58
    s_addc_u32 s57, s23, 0
    v_mov_b32 v2, 0
    """)
    for i in range(18):
        a(f"v_mov_b32 v4, s{60+2*i}")
        a(f"v_mov_b32 v5, s{61+2*i}")
        a(f"global_store_dwordx2 v2, v[4:5], s[56:57] offset:{8*i}")
    a("s_waitcnt vmcnt(0)")

def srd(a, d, lo, size):
    a(f"s_mov_b32 s{d}, s{lo}\ns_mov_b32 s{d+1}, s{lo+1}\ns_mov_b32 s{d+2}, {size}\ns_mov_b32 s{d+3}, 0x20000")

X, W, WS, G, WOA, WOB, DBG = 24, 28, 32, 36, 40, 44, 48
RT, CG, BR, HG, RT2, CT, ROT1S, ROT2S = 52, 53, 54, 55, 96, 97, 98, 99
T0, T1, T2, T3 = 56, 57, 58, 59

def p2_decode(a):
    a(f"""
    s_lshr_b32 s{T1}, s2, 3
    s_and_b32 s{RT2}, s{T1}, 3
    s_lshr_b32 s{CT}, s{T1}, 2
    s_lshl1_add_u32 s{ROT2S}, s{RT2}, s{CT}
    s_lshl_b32 s{ROT2S}, s{ROT2S}, 1
    s_and_b32 s{T0}, s2, 7
    s_lshl2_add_u32 s{RT2}, s{T0}, s{RT2}
    """)
    if not ROT2: a(f"s_mov_b32 s{ROT2S}, 0")

def gen(a, name):
    if ALIGN: a(".p2align 12")
    a(kernel_open(name))
    if STAMPS: a("s_memrealtime s[92:93]")
    stamp(a, 0)
    a("s_load_dwordx16 s[4:19], s[0:1], 0\ns_load_dwordx4 s[20:23], s[0:1], 64")
    a("s_cmp_ge_u32 s2, 256")
    a("s_cbranch_scc1 K_END")
    if CODEPF:
        a(f"""
        s_getpc_b64 s[56:57]
        v_lshlrev_b32 v1, 7, v0
        v_cmp_gt_u32 vcc, {CODEPF}, v0
        s_and_saveexec_b64 s[58:59], vcc
        s_cbranch_execz L_NOPF
        global_load_dword v255, v1, s[56:57]
        L_NOPF:
        s_mov_b64 exec, s[58:59]
        """)
    if SMODE == 2: stamp(a, 6)
    a(f"""
    v_lshrrev_b32 v1, 6, v0
    v_and_b32 v0, 63, v0
    s_and_b32 s{T0}, s2, 1
    s_lshr_b32 s{T1}, s2, 3
    v_readfirstlane_b32 s3, v1
    s_and_b32 s{T1}, s{T1}, 7
    s_lshl3_add_u32 s{RT}, s{T0}, s{T1}
    s_lshr_b32 s{T0}, s2, 1
    s_and_b32 s{T0}, s{T0}, 3
    s_lshr_b32 s{T1}, s2, 6
    s_lshl2_add_u32 s{CG}, s{T0}, s{T1}
    s_lshr_b32 s{BR}, s{CG}, 3
    s_and_b32 s{HG}, s{CG}, 7
    s_cmp_ge_u32 s3, 4
    s_cbranch_scc1 K_CONS0
    """)
    CONS0 = f"""
    K_CONS0:
    s_sub_u32 s101, s3, 4
    s_lshl_b32 s{T0}, s{RT}, 6
    s_lshl2_add_u32 s{T0}, s{CG}, s{T0}
    s_add_u32 s{T0}, s{T0}, s101
    v_lshrrev_b32 v3, 5, v0
    v_lshl_add_u32 v3, s{T0}, 1, v3
    v_and_b32 v4, 31, v0
    v_lshlrev_b32 v28, 5, v4
    v_lshl_add_u32 v27, v3, 10, v28
    s_waitcnt lgkmcnt(0)
    global_load_dwordx4 v[32:35], v27, s[4:5]
    global_load_dwordx4 v[36:39], v27, s[4:5] offset:16
    global_load_dwordx4 v[40:43], v28, s[16:17]
    global_load_dwordx4 v[44:47], v28, s[16:17] offset:16
    s_branch K_CONS
    """
    if C0POS == 0:
        a("s_branch K_LOAD")
        a(CONS0)
        a("K_LOAD:")
    if SMODE == 2: stamp(a, 7)
    a(f"""
    v_lshrrev_b32 v1, 3, v0          ; r
    v_and_b32 v2, 7, v0              ; c
    s_and_b32 s{T0}, s3, 1
    s_lshl_b32 s{T1}, s{T0}, 2
    v_lshrrev_b32 v3, 1, v1
    v_add_u32 v3, s{T1}, v3
    v_xor_b32 v3, v2, v3             ; x chunk
    s_lshl_b32 s{T2}, s3, 3
    v_add_u32 v6, s{T2}, v1          ; 8*lw + r
    s_lshl_b32 s{T1}, s{RT}, 7
    s_sub_u32 s{T1}, s{T1}, 16
    v_add_u32 v4, s{T1}, v6          ; row
    v_lshlrev_b32 v3, 4, v3
    v_max_i32 v5, 0, v4
    v_lshl_add_u32 v16, v5, 10, v3
    v_lshl_add_u32 v5, v4, 10, v3
    v_add_u32 v17, 0x8000, v5
    v_add_u32 v18, 0x10000, v5
    v_add_u32 v19, 0x18000, v5
    v_add_u32 v20, 0x20000, v5
    v_and_b32 v3, 2, v1
    s_lshl_b32 s{T1}, s{T0}, 2
    v_or_b32 v3, s{T1}, v3
    v_xor_b32 v3, v2, v3
    v_lshlrev_b32 v7, 4, v3
    v_mul_u32_u24 v4, 3072, v6
    s_lshl_b32 s{T1}, s{HG}, 7
    v_add3_u32 v21, v4, v7, s{T1}
    """)
    if SMODE == 2: stamp(a, 8)
    for i in range(1, 6):
        a(f"v_add_u32 v{21+i}, {(i>>1)*1024 + (i&1)*32*3072}, v21")
    if ROT == 0: a(f"s_mov_b32 s{ROT1S}, 0")
    elif ROT == 1: a(f"s_lshl1_add_u32 s{ROT1S}, s{CG}, s{RT}")
    elif ROT == 3: a(f"s_add_u32 s{ROT1S}, s{CG}, s{RT}\ns_lshl_b32 s{ROT1S}, s{ROT1S}, 1")
    elif ROT == 5:
        a(f"s_add_u32 s{T0}, s{CG}, s{RT}\ns_mul_i32 s{T1}, s{T0}, 86\ns_lshr_b32 s{T1}, s{T1}, 8\ns_mul_i32 s{T1}, s{T1}, 3\ns_sub_u32 s{T0}, s{T0}, s{T1}\ns_mul_i32 s{ROT1S}, s{T0}, 3")
    elif ROT == 2: a(f"s_add_u32 s{ROT1S}, s{CG}, s{RT}\ns_lshl_b32 s{ROT1S}, s{ROT1S}, 2")
    a(f"s_lshl_b32 s100, s3, 10")
    a(f"""
    s_mov_b32 s{X+2}, 0x200000
    s_mov_b32 s{X+3}, 0x20000
    s_mov_b32 s{W+2}, 0x180000
    s_mov_b32 s{W+3}, 0x20000
    s_cmp_eq_u32 s{BR}, 0
    {"s_memtime s[78:79]" if SMODE == 2 and STAMPS else ""}
    s_waitcnt lgkmcnt(0)
    s_mov_b32 s{X}, s4
    s_mov_b32 s{X+1}, s5
    s_cselect_b32 s{W}, s6, s12
    s_cselect_b32 s{W+1}, s7, s13
    """)
    vm = VM(a)
    stamp(a, 1)
    def issue(s):
        slot = SLOTADDR[s % 3]
        a(f"s_add_u32 s{T0}, s{ROT1S}, {s}")
        a(f"s_and_b32 s{T0}, s{T0}, 7")
        a(f"s_mul_i32 s{T1}, s{T0}, {64*3072}")
        a(f"s_lshl_b32 s{T0}, s{T0}, 7")
        l1 = a.label("ex")
        a("s_cmp_ge_u32 s3, 2")
        a(f"s_cbranch_scc1 {l1}")
        a(f"s_add_u32 m0, s100, {slot + 4096*4}")
        a("s_nop 0")
        a(f"buffer_load_dwordx4 v20, s[{X}:{X+3}], s{T0} offen lds")
        l2 = a.label("ex")
        a(f"s_branch {l2}")
        a(f"{l1}:")
        dummy = f"buffer_load_dword v31, v16, s[{X}:{X+3}], s{T0} offen"
        if s in (1, 3):
            l3 = a.label("ex")
            a("s_cmp_eq_u32 s3, 2")
            a(f"s_cbranch_scc1 {l3}")
            a("s_mov_b64 exec, 1")
            if s == 1: a(f"buffer_store_dword v30, v14, s[{WS}:{WS+3}], 0 offen sc1")
            else: a(f"buffer_atomic_add v15, v13, s[{DBG}:{DBG+3}], 0 offen sc1")
            a("s_mov_b64 exec, -1")
            a(f"s_branch {l2}")
            a(f"{l3}:")
        a(dummy)
        a(f"{l2}:")
        vm.op(f"st{s}")
        if XFIRST: order = [("x", i) for i in range(4)] + [("w", i) for i in range(6)]
        else:
            order = []
            for i in range(6):
                order.append(("w", i))
                if i < 4: order.append(("x", i))
        for kind, i in order:
            if kind == "x":
                a(f"s_add_u32 m0, s100, {slot + 4096*i}")
                a("s_nop 0")
                a(f"buffer_load_dwordx4 v{16+i}, s[{X}:{X+3}], s{T0} offen lds")
            else:
                a(f"s_add_u32 m0, s100, {slot + XB + 4096*i}")
                a("s_nop 0")
                a(f"buffer_load_dwordx4 v{21+i}, s[{W}:{W+3}], s{T1} offen lds")
            vm.op(f"st{s}")
    def wo_issue(lst):
        for b, i in lst:
            a(f"s_add_u32 s{T0}, s{ROT2S}, {i}")
            a(f"s_and_b32 s{T0}, s{T0}, 15")
            a(f"s_add_u32 m0, s100, {WB + b*65536 + i*4096}")
            a(f"s_lshl_b32 s{T0}, s{T0}, 15")
            r = WOB if b else WOA
            a(f"buffer_load_dwordx4 v27, s[{r}:{r+3}], s{T0} offen lds")
            vm.op("wo")
    for s in range(3):
        issue(s)
        stamp(a, 2 + s)
        if s == 0:
            srd(a, WOA, 8, 0x80000)
            srd(a, WOB, 14, 0x80000)
            srd(a, DBG, 20, 256)
            srd(a, WS, 22, 0x10000000)
            p2_decode(a)
            a(f"""
            s_lshl_b32 s{T1}, s{CT}, 7
            v_lshl_add_u32 v27, v6, 10, v7
            v_add_u32 v27, s{T1}, v27
            s_lshl_b32 s{T0}, s{RT}, 8
            s_lshl2_add_u32 s{T0}, s{CG}, s{T0}
            s_add_u32 s{T0}, s{T0}, {F_OFF}
            v_mov_b32 v14, s{T0}
            v_mov_b32 v30, 0
            s_lshl_b32 s{T0}, s{RT}, {2 if DBGST >= 0 else 4}
            s_add_u32 s{T0}, s{T0}, {128 if DBGST >= 0 else 0}
            v_mov_b32 v13, s{T0}
            v_mov_b32 v15, 1
            """)
        if PRO == s + 1:
            vm.wait("st0"); stamp(a, 5); a("s_barrier")
    GR = {4: [(1, i) for i in range(8, 16)],
          5: [(1, i) for i in range(8)] + [(0, 14), (0, 15)],
          6: [(0, i) for i in range(3, 14)],
          7: [(0, i) for i in range(3)]}
    for s in range(8):
        if s < 7: vm.wait(f"st{s+1}")
        if SMODE == 0 and s in (0, 4, 6): stamp(a, {0: 6, 4: 7, 6: 8}[s])
        if SMODE == 1: stamp(a, 6 + s)
        a("s_barrier")
        if s + 3 <= 7: issue(s + 3)
        if s in GR and not NOWO: wo_issue(GR[s])
    if NOWO:
        for s in GR: wo_issue(GR[s])
    if SMODE == 0: stamp(a, 9)
    a(f"""
    s_lshr_b32 s{T0}, s{RT2}, 1
    s_lshl_b32 s{T1}, s{T0}, {2 if DBGST >= 0 else 4}
    s_add_u32 s{T1}, s{T1}, {128 if DBGST >= 0 else 0}
    v_mov_b32 v28, s{T1}
    s_lshl_b32 s{T1}, s{T0}, 8
    s_add_u32 s{T1}, s{T1}, {F_OFF}
    v_and_b32 v29, 15, v0
    v_lshl_add_u32 v29, v29, 2, s{T1}
    s_cmp_eq_u32 s3, 0
    s_cbranch_scc0 L_NOINIT
    s_mov_b32 s{T2}, {SPIN}
    L_INIT:
    buffer_load_dword v30, v28, s[{DBG}:{DBG+3}], 0 offen sc1
    s_sub_u32 s{T2}, s{T2}, 1
    s_waitcnt vmcnt(0)
    v_cmp_gt_u32 vcc, 16, v30
    s_cmp_eq_u32 s{T2}, 0
    s_cbranch_scc1 L_NOINIT
    s_cbranch_vccnz L_INIT
    L_NOINIT:
    s_waitcnt vmcnt(0)
    """)
    a("s_branch K_P2")
    if C0POS == 1: a(CONS0)
    a("K_CONS:")
    QA, KA, VA = 16, 48, 84
    FA = (120, 168)
    CCUR, CPREV, CPF, PM, ONES = 216, 220, 224, 228, 232
    srd(a, WS, 22, 0x10000000)
    p2_decode(a)
    a(f"""
    s_lshl_b32 s{T0}, s{RT}, 8
    s_lshl2_add_u32 s{T0}, s{CG}, s{T0}
    s_add_u32 s{T0}, s{T0}, {F_OFF}
    v_mov_b32 v14, s{T0}
    v_mov_b32 v30, 0
    v_mov_b32 v244, {CNT}
    v_lshlrev_b32 v29, 2, v3
    v_add_u32 v29, {G_OFF}, v29
    ds_write_b32 v244, v30
    """)
    if TOUCH:
        a(f"""
        s_cmp_eq_u32 s101, 1
        s_cbranch_scc0 L_NOTOUCH
        s_mov_b64 exec, 1
        s_lshl_b32 s{T0}, s{RT2}, 16
        v_mov_b32 v254, s{T0}
        s_lshl_b32 s{T0}, s{RT2}, 17
        v_mov_b32 v253, s{T0}
        global_load_dword v255, v30, s[8:9]
        global_load_dword v255, v30, s[14:15]
        global_load_dword v255, v254, s[18:19]
        global_load_dword v255, v253, s[22:23]
        s_mov_b64 exec, -1
        L_NOTOUCH:
        """)
    a(f"""
    v_lshrrev_b32 v1, 4, v0          ; g
    v_and_b32 v2, 15, v0             ; n
    v_lshrrev_b32 v3, 1, v2
    v_xor_b32 v3, v1, v3
    v_lshlrev_b32 v3, 4, v3
    v_lshl_add_u32 v6, v2, 7, v3
    v_xor_b32 v7, 64, v6
    v_add_u32 v4, {SLOTADDR[0]}, v6
    v_add_u32 v5, {SLOTADDR[0]}, v7
    v_add_u32 v8, {SLOTADDR[2]}, v6
    v_add_u32 v9, {SLOTADDR[2]}, v7
    v_lshrrev_b32 v3, 2, v2          ; r
    v_lshl_add_u32 v11, v1, 3, v3
    v_lshlrev_b32 v11, 7, v11
    v_lshrrev_b32 v3, 1, v3
    v_and_b32 v15, 1, v1
    v_lshl_or_b32 v3, v15, 1, v3     ; f
    v_xor_b32 v3, s101, v3
    v_lshl_add_u32 v11, v3, 5, v11
    v_and_b32 v3, 3, v2
    v_lshl_add_u32 v11, v3, 3, v11
    v_add_u32 v11, {XB}, v11
    v_add_u32 v10, {SLOTADDR[0]}, v11
    v_add_u32 v12, {SLOTADDR[2]}, v11
    s_lshl_b32 s{T0}, s{HG}, 2
    s_add_u32 s{T0}, s{T0}, s101     ; h
    s_lshl_b32 s{T1}, s{RT}, 18
    s_lshl_b32 s{T2}, s{BR}, 14
    s_add_u32 s{T1}, s{T1}, s{T2}
    s_lshr_b32 s{T2}, s{T0}, 1
    s_lshl_b32 s{T2}, s{T2}, 10
    s_add_u32 s{T1}, s{T1}, s{T2}
    s_and_b32 s{T2}, s{T0}, 1
    s_lshl_b32 s{T2}, s{T2}, 9
    s_add_u32 s{T1}, s{T1}, s{T2}
    v_and_b32 v3, 1, v1
    v_lshlrev_b32 v13, 15, v3
    v_lshrrev_b32 v3, 1, v1
    v_lshl_add_u32 v13, v3, 8, v13
    v_lshl_add_u32 v13, v2, 4, v13
    v_add_u32 v13, s{T1}, v13
    s_mov_b32 s{T2}, {NEG}
    v_lshlrev_b32 v3, 2, v1
    v_sub_u32 v3, v2, v3
    """)
    for i in range(4):
        a(f"""
        v_subrev_u32 v16, {i}, v3
        v_and_b32 v15, 1, v16
        v_cmp_eq_u32 s[40:41], 0, v15
        v_cmp_le_i32 s[42:43], 0, v16
        s_nop 1
        s_and_b64 s[44:45], s[40:41], s[42:43]
        s_andn2_b64 s[46:47], s[40:41], s[42:43]
        v_mov_b32 v15, s{T2}
        v_cndmask_b32 v{CCUR+i}, v15, 0, s[44:45]
        v_cndmask_b32 v{CPREV+i}, v15, 0, s[46:47]
        v_mov_b32 v16, {"0xffff" if i % 2 == 0 else "0xffff0000"}
        v_cndmask_b32 v{236+i}, 0, v16, s[46:47]
        v_cndmask_b32 v{240+i}, 0, v16, s[44:45]
        """)
    a(f"""
    v_or_b32 v{PM}, v236, v237
    v_or_b32 v{PM+1}, v238, v239
    v_or_b32 v{PM+2}, v240, v241
    v_or_b32 v{PM+3}, v242, v243
    s_cmp_eq_u32 s{RT}, 0
    s_cselect_b64 s[44:45], -1, 0
    v_mov_b32 v15, s{T2}
    """)
    for i in range(4):
        a(f"v_cndmask_b32 v{CPF+i}, v{CPREV+i}, v15, s[44:45]")
        a(f"v_mov_b32 v{ONES+i}, 0x3f803f80")
    a("s_waitcnt vmcnt(0)" if False else "")
    a("v_mov_b32 v60, 0\nv_mov_b32 v61, 0")
    a("""
    s_cmp_eq_u32 s101, 1
    s_cbranch_scc1 L_GW4
    s_waitcnt vmcnt(0)
    L_GW4:
    s_waitcnt vmcnt(%d)
    """ % (4 if TOUCH else 0))
    for j in range(8):
        a(f"""
        v_lshlrev_b32 v50, 16, v{32+j}
        v_and_b32 v51, 0xffff0000, v{32+j}
        v_lshlrev_b32 v52, 16, v{40+j}
        v_and_b32 v53, 0xffff0000, v{40+j}
        v_mul_f32 v50, v50, v52
        v_mul_f32 v51, v51, v53
        v_cvt_pk_bf16_f32 v50, v50, v51
        v_lshlrev_b32 v52, 16, v50
        v_and_b32 v53, 0xffff0000, v50
        v_add_f32 v60, v60, v52
        v_add_f32 v61, v61, v53
        """)
    a("v_add_f32 v60, v60, v61")
    for rot in (8, 4, 2, 1):
        a("s_nop 1")
        a(f"v_add_f32_dpp v60, v60, v60 row_ror:{rot} row_mask:0xf bank_mask:0xf")
    a(f"""
    v_mov_b32 v61, v60
    s_nop 1
    v_permlane16_swap_b32 v60, v61
    s_nop 1
    v_add_f32 v60, v60, v61
    v_cvt_pk_bf16_f32 v60, v60, v60
    v_lshlrev_b32 v60, 16, v60
    v_mul_f32 v60, 0xbfb8aa3b, v60
    v_exp_f32 v60, v60
    s_nop 0
    v_add_f32 v60, 1.0, v60
    v_rcp_f32 v60, v60
    s_nop 0
    v_cvt_pk_bf16_f32 v60, v60, v60
    v_lshlrev_b32 v60, 16, v60
    s_mov_b32 exec_lo, 1
    s_mov_b32 exec_hi, 1
    buffer_store_dword v60, v29, s[{WS}:{WS+3}], 0 offen sc1
    s_mov_b64 exec, -1
    s_waitcnt lgkmcnt(0)
    """)
    def reads(s, sub, fs):
        slot = s % 3
        base = FA[fs]
        r = []
        for sec in range(3):
            for half in range(2):
                r.append(f"ds_read_b64_tr_b16 {vr(base+36+4*sec+2*half, 2)}, v{10+slot} offset:{sec*8192 + sub*4096 + half*512}")
        for T in range(9):
            r.append(f"ds_read_b128 {vr(base+4*T, 4)}, v{4+2*slot+sub} offset:{T*2048}")
        return r
    def mfmas(fs, first):
        base = FA[fs]
        m = []
        Xr = lambda T: vr(base + 4*T, 4)
        Wr = lambda sec: vr(base + 36 + 4*sec, 4)
        for T in range(9):
            d = vr(KA + 4*T, 4); m.append(f"v_mfma_f32_16x16x32_bf16 {d}, {Wr(1)}, {Xr(T)}, {0 if first else d}")
            d = vr(VA + 4*T, 4); m.append(f"v_mfma_f32_16x16x32_bf16 {d}, {Xr(T)}, {Wr(2)}, {0 if first else d}")
            if T >= 1:
                d = vr(QA + 4*(T-1), 4); m.append(f"v_mfma_f32_16x16x32_bf16 {d}, {Wr(0)}, {Xr(T)}, {0 if first else d}")
        return m
    def interleave(m, r):
        for i, x in enumerate(m):
            a(x)
            if i < len(r): a(r[i])
    stamp(a, 1)
    a("s_barrier")
    stamp(a, 2)
    for x in reads(0, 0, 0): a(x)
    a("s_waitcnt lgkmcnt(0)")
    for s in range(8):
        interleave(mfmas(0, s == 0), reads(s, 1, 1))
        a("s_waitcnt lgkmcnt(0)")
        a("s_barrier")
        if SMODE == 0 and s in (0, 1, 4, 6): stamp(a, {0: 3, 1: 4, 4: 5, 6: 6}[s])
        if SMODE == 1: stamp(a, 3 + s)
        interleave(mfmas(1, False), reads(s + 1, 0, 0) if s < 7 else [])
        if s < 7: a("s_waitcnt lgkmcnt(0)")
    stamp(a, 7 if SMODE == 0 else 11)
    QP, KP, VP = 120, 136, 154
    L, M = 80, 96
    a("s_nop 7")
    for T in range(9):
        a(f"v_cvt_pk_bf16_f32 v{KP+2*T}, v{KA+4*T}, v{KA+4*T+1}")
        a(f"v_cvt_pk_bf16_f32 v{KP+2*T+1}, v{KA+4*T+2}, v{KA+4*T+3}")
        a(f"v_cvt_pk_bf16_f32 v{VP+2*T}, v{VA+4*T}, v{VA+4*T+1}")
        a(f"v_cvt_pk_bf16_f32 v{VP+2*T+1}, v{VA+4*T+2}, v{VA+4*T+3}")
        if T >= 1:
            a(f"v_cvt_pk_bf16_f32 v{QP+2*(T-1)}, v{QA+4*(T-1)}, v{QA+4*(T-1)+1}")
            a(f"v_cvt_pk_bf16_f32 v{QP+2*(T-1)+1}, v{QA+4*(T-1)+2}, v{QA+4*(T-1)+3}")
    a("s_nop 1")
    SC = lambda T: 16 + 8*(T-1)
    for T in range(1, 9):
        q = vr(QP + 2*(T-1), 2)
        a(f"v_mfma_f32_16x16x16_bf16 {vr(SC(T),4)}, {vr(KP+2*T,2)}, {q}, {vr(CCUR,4)}")
        a(f"v_mfma_f32_16x16x16_bf16 {vr(SC(T)+4,4)}, {vr(KP+2*(T-1),2)}, {q}, {vr(CPF if T == 1 else CPREV,4)}")
    a("s_nop 7")
    for T in range(1, 9):
        s0 = SC(T); l = L + 2*(T-1)
        a(f"v_max3_f32 v{l}, v{s0}, v{s0+1}, v{s0+4}")
        a(f"v_max3_f32 v{l+1}, v{s0+2}, v{s0+3}, v{s0+6}")
        a(f"v_max_f32 v{l}, v{l}, v{s0+5}")
        a(f"v_max_f32 v{l+1}, v{l+1}, v{s0+7}")
        a(f"v_max_f32 v{M+T-1}, v{l}, v{l+1}")
    a(f"s_mov_b32 s{T2}, {CSC}")
    B = [(M, M+1, M+2, M+3), (M+4, M+5, M+6, M+7)]
    a("s_nop 0")
    for (p, q, r, s) in B:
        a(f"v_permlane32_swap_b32 v{p}, v{q}")
        a(f"v_permlane32_swap_b32 v{r}, v{s}")
    a("s_nop 0")
    for (p, q, r, s) in B:
        a(f"v_max_f32 v{p}, v{p}, v{q}")
        a(f"v_max_f32 v{r}, v{r}, v{s}")
    a("s_nop 1")
    for (p, q, r, s) in B: a(f"v_permlane16_swap_b32 v{p}, v{r}")
    a("s_nop 1")
    for (p, q, r, s) in B: a(f"v_max_f32 v{p}, v{p}, v{r}")
    for (p, q, r, s) in B: a(f"v_mul_f32 v{p}, s{T2}, v{p}")
    for (p, q, r, s) in B: a(f"v_mov_b32 v{r}, v{p}")
    a("s_nop 1")
    for (p, q, r, s) in B: a(f"v_permlane16_swap_b32 v{p}, v{r}")
    a("s_nop 1")
    for (p, q, r, s) in B:
        a(f"v_mov_b32 v{q}, v{p}")
        a(f"v_mov_b32 v{s}, v{r}")
    a("s_nop 1")
    for (p, q, r, s) in B:
        a(f"v_permlane32_swap_b32 v{p}, v{q}")
        a(f"v_permlane32_swap_b32 v{r}, v{s}")
    a("s_nop 1")
    for T in range(1, 9):
        l = L + 2*(T-1)
        a(f"v_fma_f32 v{l}, v{l}, s{T2}, -v{M+T-1}")
        a(f"v_fma_f32 v{l+1}, v{l+1}, s{T2}, -v{M+T-1}")
    for T in range(1, 9):
        l = L + 2*(T-1)
        a(f"v_exp_f32 v{l}, v{l}")
        a(f"v_exp_f32 v{l+1}, v{l+1}")
    a("s_nop 0")
    for T in range(1, 9):
        l = L + 2*(T-1)
        a(f"v_cvt_pk_bf16_f32 v{l}, v{l}, v{l}")
        a(f"v_cvt_pk_bf16_f32 v{l+1}, v{l+1}, v{l+1}")
    PR = lambda T: 16 + 4*(T-1)
    for T in range(1, 9):
        l = L + 2*(T-1); p = PR(T)
        a(f"v_and_b32 v{p}, v{l}, v{PM}")
        a(f"v_and_b32 v{p+1}, v{l+1}, v{PM+1}")
        a(f"v_and_b32 v{p+2}, v{l}, v{PM+2}")
        a(f"v_and_b32 v{p+3}, v{l+1}, v{PM+3}")
    a("s_nop 1")
    OO = lambda T: 48 + 4*(T-1)
    SUM = lambda T: 176 + 4*(T-1)
    for T in range(1, 9):
        a(f"v_mfma_f32_16x16x32_bf16 {vr(SUM(T),4)}, {vr(ONES,4)}, {vr(PR(T),4)}, 0")
        a(f"v_mfma_f32_16x16x32_bf16 {vr(OO(T),4)}, {vr(VP+2*(T-1),4)}, {vr(PR(T),4)}, 0")
    a("s_nop 7")
    for T in range(1, 9): a(f"v_rcp_f32 v{M+T-1}, v{SUM(T)}")
    a("s_nop 0")
    for T in range(1, 9):
        o = OO(T)
        for i in range(4): a(f"v_mul_f32 v{o+i}, v{o+i}, v{M+T-1}")
    for i in range(4):
        ob = 80 + 4*i
        o0, o1 = OO(2*i+1), OO(2*i+2)
        a(f"v_cvt_pk_bf16_f32 v{ob}, v{o0}, v{o0+1}")
        a(f"v_cvt_pk_bf16_f32 v{ob+1}, v{o0+2}, v{o0+3}")
        a(f"v_cvt_pk_bf16_f32 v{ob+2}, v{o1}, v{o1+1}")
        a(f"v_cvt_pk_bf16_f32 v{ob+3}, v{o1+2}, v{o1+3}")
    a("s_nop 1")
    for i in range(4):
        ob = 80 + 4*i
        a(f"v_permlane16_swap_b32 v{ob}, v{ob+2}")
        a(f"v_permlane16_swap_b32 v{ob+1}, v{ob+3}")
        a(f"s_mov_b32 s{T0}, {65536*i}")
        a(f"buffer_store_dwordx4 {vr(ob,4)}, v13, s[{WS}:{WS+3}], s{T0} offen sc1")
    stamp(a, 8 if SMODE == 0 else 12)
    a(f"""
    v_mov_b32 v15, 1
    s_mov_b64 exec, 1
    s_waitcnt vmcnt(0)
    ds_add_rtn_u32 v246, v244, v15
    s_waitcnt lgkmcnt(0)
    v_cmp_eq_u32 vcc, 3, v246
    s_cbranch_vccz L_NOFLAG
    buffer_store_dword v15, v14, s[{WS}:{WS+3}], 0 offen sc1
    L_NOFLAG:
    s_mov_b64 exec, -1
    """)
    if SMODE == 0: stamp(a, 9)
    a("K_P2:")
    ACC = 24
    OF = 40
    NOB = min(OINF, 16)
    WF = (OF + 4*NOB, OF + 4*NOB + 16)
    WP = WF[1] + 16
    assert WP + 16*PRE <= 256, WP + 16*PRE
    NSTR = 16 - PRE
    a(f"""
    s_lshr_b32 s{BR}, s3, 2          ; b
    s_and_b32 s{HG}, s3, 3           ; rq
    s_lshl_b32 s{T0}, s{RT2}, 2
    s_add_u32 s{T0}, s{T0}, s{HG}    ; t
    s_lshl_b32 s{T1}, s{T0}, 1
    s_add_u32 s{T1}, s{T1}, s{BR}
    s_lshl_b32 s{T1}, s{T1}, 14
    v_lshl_add_u32 v18, v0, 4, s{T1} ; o offset
    v_lshrrev_b32 v1, 4, v0
    v_and_b32 v2, 15, v0
    s_lshl_b32 s{T1}, s{T0}, 4
    v_add_u32 v3, s{T1}, v2          ; token
    v_lshlrev_b32 v19, 2, v3
    v_add_u32 v19, {G_OFF}, v19
    s_lshl_b32 s{T1}, s{CT}, 7
    s_lshl_b32 s{T2}, s{BR}, 6
    s_add_u32 s{T1}, s{T1}, s{T2}
    v_lshl_add_u32 v20, v3, 10, s{T1}
    v_and_b32 v3, 1, v1
    v_lshl_add_u32 v20, v3, 5, v20
    v_lshrrev_b32 v3, 1, v1
    v_lshl_add_u32 v20, v3, 4, v20
    v_lshrrev_b32 v3, 2, v2
    v_lshl_add_u32 v4, v1, 3, v3
    v_lshlrev_b32 v4, 7, v4
    v_lshrrev_b32 v3, 1, v3
    v_and_b32 v5, 1, v1
    v_lshl_or_b32 v3, v5, 1, v3
    v_and_b32 v5, 3, v2
    v_lshl_add_u32 v4, v5, 3, v4
    s_lshl_b32 s{T1}, s{BR}, 16
    s_add_u32 s{T1}, s{T1}, {WB}
    v_add_u32 v4, s{T1}, v4
    """)
    for j in range(4):
        a(f"v_xor_b32 v5, {j}, v3")
        a(f"v_lshl_add_u32 v{8+j}, v5, 5, v4")
    a(f"""
    s_lshl_b32 s{T1}, s3, 11
    v_lshl_add_u32 v12, v0, 4, s{T1}
    v_xor_b32 v13, 8192, v12
    """)
    srd(a, G, 18, 0x200000)
    a("s_barrier")
    if SMODE == 0: stamp(a, 10)
    def wreads(i, base):
        r = []
        for j in range(4):
            for half in range(2):
                r.append(f"ds_read_b64_tr_b16 {vr(base+4*j+2*half,2)}, v{8+j} offset:{i*4096+half*512}")
        return r
    a("s_cmp_eq_u32 s3, 0")
    a("s_cbranch_scc0 L_NOPOLL0")
    a(f"buffer_load_dword v30, v29, s[{WS}:{WS+3}], 0 offen sc1")
    a("L_NOPOLL0:")
    for p in range(PRE):
        for x in wreads(NSTR + p, WP + 16*p): a(x)
    for x in wreads(0, WF[0]): a(x)
    a(f"""
    s_cmp_eq_u32 s3, 0
    s_cbranch_scc0 L_GO
    s_mov_b32 s{T2}, {SPIN}
    L_POLL:
    s_waitcnt vmcnt(0)
    v_cmp_ne_u32 vcc, 1, v30
    s_sub_u32 s{T2}, s{T2}, 1
    s_cbranch_vccz L_GO
    s_cmp_eq_u32 s{T2}, 0
    s_cbranch_scc1 L_GO
    buffer_load_dword v30, v29, s[{WS}:{WS+3}], 0 offen sc1
    s_branch L_POLL
    L_GO:
    s_barrier
    """)
    if SMODE == 0: stamp(a, 11)
    vm = VM(a)
    def oload(i):
        a(f"s_add_u32 s{T0}, s{ROT2S}, {i}")
        a(f"s_and_b32 s{T0}, s{T0}, 15")
        a(f"s_lshl_b32 s{T0}, s{T0}, 10")
        a(f"buffer_load_dwordx4 {vr(OF+4*(i % NOB),4)}, v18, s[{WS}:{WS+3}], s{T0} offen sc1"); vm.op(f"o{i}")
    for i in range(NOB): oload(i)
    if NOB == 16:
        a(f"buffer_load_dword v21, v19, s[{WS}:{WS+3}], 0 offen sc1"); vm.op("g")
    for i in range(16):
        r = wreads(i + 1, WF[(i+1) & 1]) if i + 1 < NSTR else []
        for x in r: a(x)
        if i <= NSTR: a(f"s_waitcnt lgkmcnt({len(r)})")
        vm.wait(f"o{i}")
        if i == 0 and SMODE == 0: stamp(a, 12)
        wb = WF[i & 1] if i < NSTR else WP + 16*(i - NSTR)
        for j in range(4):
            d = vr(ACC + 4*j, 4)
            a(f"v_mfma_f32_16x16x32_bf16 {d}, {vr(wb+4*j,4)}, {vr(OF+4*(i % NOB),4)}, {0 if i == 0 else d}")
        if i + NOB < 16: oload(i + NOB)
        if i + NOB == 16 and NOB < 16:
            a(f"buffer_load_dword v21, v19, s[{WS}:{WS+3}], 0 offen sc1"); vm.op("g")
    if SMODE == 0: stamp(a, 13)
    a("s_nop 7")
    a(f"s_cmp_eq_u32 s{BR}, 0")
    a("s_cbranch_scc0 K2_B1")
    for b in range(2):
        if b == 1: a("K2_B1:")
        give = ACC + 8*(1-b); keep = ACC + 8*b
        a(f"ds_write_b128 v12, {vr(give,4)}")
        a(f"ds_write_b128 v12, {vr(give+4,4)} offset:1024")
        a("s_waitcnt vmcnt(0)")
        a("v_sub_f32 v22, 1.0, v21")
        a("v_cvt_pk_bf16_f32 v22, v22, v22")
        a("v_lshlrev_b32 v22, 16, v22")
        ck, cr = (21, 22) if b == 0 else (22, 21)
        for i in range(8): a(f"v_mul_f32 v{keep+i}, v{keep+i}, v{ck}")
        a("s_waitcnt lgkmcnt(0)")
        a("s_barrier")
        a(f"ds_read_b128 v[48:51], v13")
        a(f"ds_read_b128 v[52:55], v13 offset:1024")
        a("s_waitcnt lgkmcnt(1)")
        for i in range(4): a(f"v_fmac_f32 v{keep+i}, v{48+i}, v{cr}")
        a("s_waitcnt lgkmcnt(0)")
        for i in range(4, 8): a(f"v_fmac_f32 v{keep+i}, v{48+i}, v{cr}")
        for i in range(4): a(f"v_cvt_pk_bf16_f32 v{56+i}, v{keep+2*i}, v{keep+2*i+1}")
        a("s_nop 1")
        a("v_permlane16_swap_b32 v56, v58")
        a("v_permlane16_swap_b32 v57, v59")
        a(f"buffer_store_dwordx4 v[56:59], v20, s[{G}:{G+3}], 0 offen {OUTMOD}")
        if b == 0: a("s_branch K2_FIN")
    a("K2_FIN:")
    stamp(a, 14)
    if STAMPS:
        a("s_waitcnt vmcnt(0)")
        stamp(a, 15)
        store_stamps(a)
    a("K_END:")
    a("s_endpgm")
    if CODEPF:
        a(".fill 512, 4, 0xbf800000")

a = Asm()
a.lines.append(HEADER.rstrip())
a.lines.append(f"; @launch grid=(256,1,1) block=(512,1,1) lds={LDS_BYTES}")
a('.amdgcn_target "amdgcn-amd-amdhsa--gfx950"')
a(".text")
gen(a, NAME + "_kernel")
a('.section .rodata,"a"')
a(".p2align 6")
a(descriptor(NAME + "_kernel", 256))
open(OUT, "w").write(a.text())
```

```python
import re

TRANS = ("v_exp_f32", "v_rcp_f32", "v_log_f32", "v_rsq_f32", "v_sqrt_f32")

def regs_of(tok):
    tok = tok.strip().lstrip("-")
    tok = tok.replace("abs(", "").replace(")", "").replace("|", "")
    m = re.fullmatch(r"([vs])\[(\d+):(\d+)\]", tok)
    if m: return {f"{m.group(1)}{i}" for i in range(int(m.group(2)), int(m.group(3)) + 1)}
    m = re.fullmatch(r"([vs])(\d+)", tok)
    if m: return {tok}
    if tok in ("vcc", "exec", "m0"): return {tok}
    return set()

class I:
    def __init__(self, text, extra_src=(), extra_dst=(), after=None):
        self.text = text
        body = text.split(";")[0].strip()
        op, _, rest = body.partition(" ")
        self.op = op
        rest = re.split(r"\s+(?=offen|offset:|row_|op_sel|sc0|sc1|nt\b|lds\b|neg_|bank_)", rest)[0]
        ops = [x for x in re.split(r",\s*", rest) if x]
        R = [regs_of(x) for x in ops]
        self.srcC = set()
        if op.startswith("v_mfma"):
            self.kind = "mfma"; self.dst = R[0]; self.srcAB = R[1] | R[2]; self.srcC = R[3]; self.src = self.srcAB | self.srcC
        elif op.startswith("v_permlane"):
            self.kind = "perm"; self.dst = R[0] | R[1]; self.src = R[0] | R[1]
        elif op.startswith("buffer_store") or op.startswith("global_store"):
            self.kind = "store"; self.dst = set(); self.src = set().union(*R)
        elif op.startswith("ds_write"):
            self.kind = "dsw"; self.dst = set(); self.src = set().union(*R)
        elif op.startswith("ds_read"):
            self.kind = "dsr"; self.dst = R[0]; self.src = set().union(*R[1:])
        elif op.startswith("s_"):
            self.kind = "salu"; self.dst = R[0] if R else set(); self.src = set().union(*R[1:]) if len(R) > 1 else set()
        else:
            self.kind = "trans" if op in TRANS else ("dpp" if "_dpp" in op else "valu")
            self.dst = R[0]; self.src = set().union(*R[1:]) if len(R) > 1 else set()
            if op.startswith("v_fmac"): self.src |= R[0]
        self.src = set(self.src) | set(extra_src); self.dst = set(self.dst) | set(extra_dst)
        self.cost = {"mfma": 8, "trans": 8}.get(self.kind, 4)
        self.pipe = 16 if self.kind == "mfma" else 0
        if op == "s_nop": self.cost = 4 * (int(ops[0]) + 1)

VAL = ("valu", "trans", "perm", "dpp")

def wait_states(p, c):
    dep = False; w = 0
    raw = p.dst & c.src; waw = p.dst & c.dst; war = p.src & c.dst
    if raw or waw or war: dep = True
    if p.kind in ("store", "dsw", "dsr") and c.kind in ("store", "dsw", "dsr") : dep = True
    if p.kind in VAL:
        if raw and c.kind == "mfma": w = max(w, 2)
        if raw and c.kind in ("perm", "dpp"): w = max(w, 2)
        if raw and p.kind == "trans" and c.kind != "trans": w = max(w, 1)
    if p.kind == "mfma":
        if c.kind == "mfma":
            if p.dst & c.srcAB: w = max(w, 8)
            if p.dst & c.srcC and not (p.dst == c.srcC and p.op == c.op): w = max(w, 6)
            if waw and not (p.dst == c.srcC and p.op == c.op): w = max(w, 8)
        else:
            if raw or waw: w = max(w, 8)
            if (p.srcC & c.dst) and c.kind in VAL: w = max(w, 3)
    if p.kind == "store" and war: w = max(w, 2)
    return w if dep else None

def latency(p, c, w):
    if p.kind == "mfma" and (p.dst & (c.src | c.dst)):
        if c.kind == "mfma" and p.dst == c.srcC: return 16
        return 40
    return p.cost + 4 * w

def schedule(ins, mfma_first=True, bias=lambda x: getattr(x, 'bias', 0)):
    n = len(ins)
    preds = [[] for _ in range(n)]; succs = [[] for _ in range(n)]
    for j in range(n):
        for i in range(j):
            w = wait_states(ins[i], ins[j])
            if w is not None:
                preds[j].append((i, w)); succs[i].append((j, w))
    prio = [0] * n
    for i in reversed(range(n)):
        prio[i] = ins[i].cost + max([latency(ins[i], ins[j], w) - ins[i].cost + prio[j] for j, w in succs[i]] + [getattr(ins[i], "tail", 0)])
    done = [False] * n; pos = [None] * n; tiss = [None] * n
    out = []; slot = 0; t = 0; pipe_free = 0
    remaining = set(range(n))
    while remaining:
        cand = []
        for j in remaining:
            if all(done[i] for i, _ in preds[j]):
                need = max([pos[i] + 1 + w - slot for i, w in preds[j]], default=0)
                tready = max([tiss[i] + latency(ins[i], ins[j], 0) for i, w in preds[j]], default=0)
                if ins[j].kind == "mfma": tready = max(tready, pipe_free)
                cand.append((need, max(0, tready - t), j))
        ok = [c for c in cand if c[0] <= 0]
        if not ok:
            k = min(c[0] for c in cand)
            out.append(f"s_nop {k-1}"); slot += k; t += 4 * k
            continue
        now = [c for c in ok if c[1] == 0]
        mnow = [c for c in now if ins[c[2]].kind == "mfma"]
        if mnow and mfma_first: j = max(mnow, key=lambda c: (prio[c[2]], -c[2]))[2]
        elif now: j = max(now, key=lambda c: (prio[c[2]] + bias(ins[c[2]]), -c[2]))[2]
        else: j = min(ok, key=lambda c: (c[1], -prio[c[2]]))[2]
        stall = [c[1] for c in ok if c[2] == j][0]
        t += stall
        tiss[j] = t; pos[j] = slot; done[j] = True; remaining.remove(j)
        out.append(ins[j].text); slot += 1; t += ins[j].cost
        if ins[j].kind == "mfma": pipe_free = tiss[j] + ins[j].pipe
    return out, t

def pad(lines):
    ins = [I(x) for x in lines]
    out = []; pos = []; slot = 0
    for j, c in enumerate(ins):
        need = 0
        for i in range(max(0, j - 12), j):
            w = wait_states(ins[i], c)
            if w: need = max(need, pos[i] + 1 + w - slot)
        if need > 0:
            out.append(f"s_nop {need-1}"); slot += need
        pos.append(slot); out.append(c.text)
        slot += (int(c.text.split()[1]) + 1) if c.op == "s_nop" else 1
    return out
```

```python
import sys
from asmlib import *
import sched

def opt(name, default):
    for x in sys.argv:
        if x.startswith(f"--{name}="): return int(x.split("=")[1])
    return default
def sopt(name, default):
    for x in sys.argv:
        if x.startswith(f"--{name}="): return x.split("=")[1]
    return default
STAMPS = "--stamps" in sys.argv
OUT = [a for a in sys.argv[1:] if not a.startswith("--")][0]
ROT = opt("rot", 6)
PRO = opt("pro", 2)
CODEPF = opt("codepf", 120)
TOUCH = opt("touch", 0)
PRE = opt("pre", 10)
OINF = opt("oinf", 4)
OUTMOD = sopt("outmod", "")
SMODE = opt("smode", 0)
ROLL = opt("roll", 1)
WOG = opt("wog", 3)
PK = opt("pk", 1)
DBGST = opt("dbgst", -1)
TAILB = opt("tailb", 400)
RTS = opt("rts", 0)
CGX = opt("cgx", 0)
WROT = opt("wrot", 1)
MORD = opt("mord", 0)
PRIO = opt("prio", 1)
APOLL = opt("apoll", 1)
REMAP = opt("remap", 1)
ROFF = opt("roff", 0)
PDEPTH = opt("pdepth", 1)
HOLD = opt("hold", 0)

STAMP_OFF = 128 << 20
G_OFF = 8 << 20
F_OFF = 9 << 20
SLOT = 43008
XB = 18432
WB = 31744
CNT = 162816
LDS_BYTES = 163840
NEG = 0xF149F2CA
CSC = 0x3EB8AA3B
SPIN = 1 << 18
slot_addr = lambda s: ((7 - s) % 3) * SLOT

class VM:
    def __init__(self, a): self.a = a; self.ops = []
    def op(self, tag): self.ops.append(tag)
    def count(self, tag):
        idx = max(i for i, t in enumerate(self.ops) if t == tag)
        return len(self.ops) - 1 - idx
    def wait(self, tag):
        n = self.count(tag)
        assert n < 64
        self.a(f"s_waitcnt vmcnt({n})")

BOTH = {0: 0, 2: 1, 3: 2, 7: 3, 8: 4, 11: 5, 13: 6, 15: 7}
def stamp(a, i, mode=None):
    if STAMPS and RTS == 3:
        B3 = {3: 0, 4: 1, 5: 2, 6: 3, 7: 4, 8: 5, 9: 6, 10: 7}
        if (mode == 1 or (mode is None and i == 3)) and i in B3:
            k = B3[i]
            a(f"s_memtime s[{60+4*k}:{61+4*k}]")
            a(f"s_memrealtime s[{62+4*k}:{63+4*k}]")
        return
    if STAMPS and RTS == 2:
        if (mode is None or mode == 0) and i in BOTH:
            k = BOTH[i]
            a(f"s_memtime s[{60+4*k}:{61+4*k}]")
            a(f"s_memrealtime s[{62+4*k}:{63+4*k}]")
        return
    if STAMPS and (mode is None or mode == SMODE):
        a(f"{'s_memrealtime' if DBGST >= 0 or RTS else 's_memtime'} s[{60+2*i}:{61+2*i}]")

def store_stamps(a):
    if DBGST >= 0:
        a("s_waitcnt lgkmcnt(0)")
        a(f"s_cmp_eq_u32 s3, {DBGST}")
        a("s_cbranch_scc0 K_END")
        a("s_mov_b64 exec, 1")
        a("s_not_b32 s60, s60")
        a("v_mov_b32 v2, 0")
        for i in range(16):
            a(f"v_mov_b32 v4, s{60+2*i}")
            a(f"global_atomic_umax v2, v4, s[20:21] offset:{4*i} sc1")
        a("s_waitcnt vmcnt(0)")
        return
    a("s_memrealtime s[94:95]")
    a("s_waitcnt lgkmcnt(0)")
    a(f"""
    s_lshl_b32 s58, s2, 3
    s_add_u32 s58, s58, s3
    s_lshl_b32 s58, s58, 8
    s_add_u32 s58, s58, {STAMP_OFF}
    s_add_u32 s56, s22, s58
    s_addc_u32 s57, s23, 0
    v_mov_b32 v2, 0
    """)
    for i in range(18):
        a(f"v_mov_b32 v4, s{60+2*i}")
        a(f"v_mov_b32 v5, s{61+2*i}")
        a(f"global_store_dwordx2 v2, v[4:5], s[56:57] offset:{8*i}")
    a("s_waitcnt vmcnt(0)")

def srd(a, d, lo, size):
    a(f"s_mov_b32 s{d}, s{lo}\ns_mov_b32 s{d+1}, s{lo+1}\ns_mov_b32 s{d+2}, {size}\ns_mov_b32 s{d+3}, 0x20000")

X, W, WS, G, WOH, WOL, DBG = 24, 28, 32, 36, 40, 44, 48
RT, CG, BR, HG, RT2, CT, ROT1S, ROT2S = 52, 53, 54, 55, 96, 97, 98, 99
T0, T1, T2, T3 = 56, 57, 58, 59
LW1K, CW = 100, 101
HSEL = 13
CSHIFT, CBASE = (2, 128) if DBGST >= 0 else (4, 0)

def p2_decode(a):
    a(f"""
    s_lshr_b32 s{T1}, s2, 3
    s_and_b32 s{RT2}, s{T1}, 3
    s_lshr_b32 s{CT}, s{T1}, 2
    s_lshr_b32 s{T0}, s{RT2}, 1
    s_lshr_b32 s{HSEL}, s{CT}, 2
    s_xor_b32 s{HSEL}, s{HSEL}, s{T0}
    s_lshl_b32 s{HSEL}, s{HSEL}, 3
    s_and_b32 s{ROT2S}, s{CT}, 3
    s_lshl_b32 s{ROT2S}, s{ROT2S}, 1
    s_andn2_b32 s{T0}, 1, s2
    s_lshr_b32 s{T1}, s2, 1
    s_and_b32 s{T1}, s{T1}, 3
    s_lshl2_add_u32 s{T0}, s{T0}, s{T1}
    s_lshl2_add_u32 s{RT2}, s{T0}, s{RT2}
    """)

ACC = 16
OF = 32
NOB = min(OINF, 16)
WF = (OF + 4*NOB, OF + 4*NOB + 16)
WP = WF[1] + 16
PA = 245
VO, VG, VOUT, VW, VXW, VXR, VGX, VF = PA, PA+1, PA+2, PA+3, PA+7, PA+8, PA+9, PA+10
MA, MB, RM = 54, 55, 59
assert WP + 16*PRE <= PA, WP + 16*PRE
assert NOB <= 8 and PRE % 2 == 0
B2, RQ, GSEL = 48, 49, 50
def wreads(i, base):
    return [f"ds_read_b64_tr_b16 {vr(base+4*j+2*half,2)}, v{VW+j} offset:{i*4096+half*512}" for j in range(4) for half in range(2)]
PH = PRE // 2
PRESET = [i for i in range(16) if (i & 7) >= 8 - PH]
pre_all = [x for p, i in enumerate(PRESET) for x in wreads(i, WP + 16*p)]

def p2_scalar(a):
    a(f"""
    s_lshr_b32 s{B2}, s3, 2          ; b
    s_and_b32 s{RQ}, s3, 3           ; rq
    s_xor_b32 s{T1}, s{B2}, s{RT2}
    s_and_b32 s{GSEL}, s{T1}, 1
    s_mov_b32 s36, s18
    s_mov_b32 s37, s19
    s_mov_b32 s38, 0x200000
    s_mov_b32 s39, 0x20000
    s_mov_b32 s51, s{HSEL}
    s_lshr_b32 s{T0}, s{HSEL}, 1
    s_lshl3_add_u32 s{T0}, s{B2}, s{T0}
    s_lshl_b32 s{MA}, 15, s{T0}
    s_xor_b32 s{T0}, s{T0}, 4
    s_lshl_b32 s{MB}, 15, s{T0}
    """)
    for i in range(8):
        a(f"s_add_u32 s{T0}, s{ROT2S}, {i}")
        a(f"s_and_b32 s{T0}, s{T0}, 7")
        a(f"s_or_b32 s{T0}, s{T0}, s51")
        a(f"s_lshl_b32 s{4+i}, s{T0}, 10")
        a(f"s_xor_b32 s{12+i}, s{4+i}, 8192")

def p2_vector():
    t = f"""
    v_lshrrev_b32 v1, 4, v0
    v_and_b32 v2, 15, v0
    v_lshrrev_b32 v3, 2, v2
    v_lshl_add_u32 v15, v1, 3, v3
    v_lshlrev_b32 v15, 7, v15
    v_lshrrev_b32 v3, 1, v3
    v_and_b32 v{VG}, 1, v1
    v_lshl_or_b32 v3, v{VG}, 1, v3
    v_and_b32 v{VO}, 3, v2
    v_lshl_add_u32 v15, v{VO}, 3, v15
    s_xor_b32 s{T1}, s{GSEL}, 1
    s_lshl_b32 s{T1}, s{T1}, 16
    s_add_u32 s{T1}, s{T1}, {WB}
    v_add_u32 v15, s{T1}, v15
    v_lshl_add_u32 v{VW}, v3, 5, v15
    v_xor_b32 v{VO}, 1, v3
    v_lshl_add_u32 v{VW+1}, v{VO}, 5, v15
    v_xor_b32 v{VO}, 2, v3
    v_lshl_add_u32 v{VW+2}, v{VO}, 5, v15
    v_xor_b32 v{VO}, 3, v3
    v_lshl_add_u32 v{VW+3}, v{VO}, 5, v15
    s_lshl2_add_u32 s{T0}, s{RT2}, s{RQ}
    s_lshl1_add_u32 s{T1}, s{T0}, s{B2}
    s_lshl_b32 s{T1}, s{T1}, 14
    v_lshl_add_u32 v{VO}, v0, 4, s{T1}
    v_lshl_add_u32 v3, s{T0}, 4, v2
    s_lshl1_add_u32 s{T1}, s{CT}, s{B2}
    s_lshl_b32 s{T1}, s{T1}, 6
    v_lshl_add_u32 v{VOUT}, v3, 10, s{T1}
    v_lshl_add_u32 v{VOUT}, v{VG}, 5, v{VOUT}
    v_lshrrev_b32 v1, 1, v1
    v_lshl_add_u32 v{VOUT}, v1, 4, v{VOUT}
    v_lshlrev_b32 v{VG}, 2, v3
    v_add_u32 v{VG}, {G_OFF}, v{VG}
    s_lshl_b32 s{T1}, s3, 11
    v_lshl_add_u32 v{VXW}, v0, 4, s{T1}
    v_xor_b32 v{VXR}, 8192, v{VXW}
    s_lshl_b32 s{T1}, s{RQ}, 8
    s_add_u32 s{T1}, s{T1}, 16384
    v_lshl_add_u32 v{VGX}, v0, 2, s{T1}
    s_lshr_b32 s{T0}, s{RT2}, 1
    s_lshl_b32 s{T0}, s{T0}, 8
    s_add_u32 s{T0}, s{T0}, {F_OFF}
    v_lshl_add_u32 v{VF}, v2, 2, s{T0}
    """
    return [x.strip() for x in t.strip().split("\n")]

def gen(a, name):
    a(".p2align 12")
    a(kernel_open(name))
    if STAMPS and DBGST < 0: a("s_memrealtime s[92:93]")
    stamp(a, 0)
    a("s_load_dwordx16 s[4:19], s[0:1], 0\ns_load_dwordx4 s[20:23], s[0:1], 64")
    a("s_cmp_ge_u32 s2, 256")
    a("s_cbranch_scc1 K_END")
    if CODEPF:
        a(f"""
        s_getpc_b64 s[56:57]
        v_lshlrev_b32 v1, 7, v0
        v_cmp_gt_u32 vcc, {CODEPF}, v0
        s_and_saveexec_b64 s[58:59], vcc
        s_cbranch_execz L_NOPF
        global_load_dword v255, v1, s[56:57]
        L_NOPF:
        s_mov_b64 exec, s[58:59]
        """)
    a(f"""
    v_lshrrev_b32 v1, 6, v0
    v_and_b32 v0, 63, v0
    s_and_b32 s{T0}, s2, 1
    s_lshr_b32 s{T1}, s2, 3
    v_readfirstlane_b32 s3, v1
    s_and_b32 s{T1}, s{T1}, 7
    s_lshl3_add_u32 s{RT}, s{T0}, s{T1}
    s_lshr_b32 s{T0}, s2, 1
    s_and_b32 s{T0}, s{T0}, 3
    {"s_lshr_b32 s%d, s%d, 1" % (T2, T0) if REMAP else ""}
    {"s_and_b32 s%d, s%d, 1" % (T0, T0) if REMAP else ""}
    {"s_lshl1_add_u32 s%d, s%d, s%d" % (T0, T0, T2) if REMAP else ""}
    s_lshr_b32 s{T1}, s2, 6
    s_lshl2_add_u32 s{CG}, s{T0}, s{T1}
    {"s_xor_b32 s%d, s%d, %d" % (CG, CG, CGX) if CGX else ""}
    s_lshr_b32 s{BR}, s{CG}, 3
    s_and_b32 s{HG}, s{CG}, 7
    s_cmp_ge_u32 s3, 4
    s_cbranch_scc0 K_LOAD
    s_sub_u32 s{CW}, s3, 4
    s_lshl_b32 s{T0}, s{RT}, 6
    s_lshl2_add_u32 s{T0}, s{CG}, s{T0}
    s_add_u32 s{T0}, s{T0}, s{CW}
    v_lshrrev_b32 v3, 5, v0
    v_lshl_add_u32 v11, s{T0}, 1, v3
    v_and_b32 v4, 31, v0
    v_lshlrev_b32 v4, 5, v4
    v_lshl_add_u32 v5, v11, 10, v4
    s_waitcnt lgkmcnt(0)
    global_load_dwordx4 v[236:239], v5, s[4:5]
    global_load_dwordx4 v[240:243], v5, s[4:5] offset:16
    global_load_dwordx4 v[244:247], v4, s[16:17]
    global_load_dwordx4 v[248:251], v4, s[16:17] offset:16
    s_branch K_CONS
    K_LOAD:
    """)
    a(f"""
    v_lshrrev_b32 v1, 3, v0          ; r
    v_and_b32 v2, 7, v0              ; c
    s_and_b32 s{T0}, s3, 1
    s_lshl_b32 s{T1}, s{T0}, 2
    v_lshrrev_b32 v3, 1, v1
    v_add_u32 v3, s{T1}, v3
    v_xor_b32 v3, v2, v3             ; x chunk
    s_lshl_b32 s{T2}, s3, 3
    v_add_u32 v6, s{T2}, v1          ; 8*lw + r
    s_lshl_b32 s{T2}, s{RT}, 7
    s_sub_u32 s{T2}, s{T2}, 16
    v_add_u32 v4, s{T2}, v6          ; row
    v_lshlrev_b32 v3, 4, v3
    v_max_i32 v5, 0, v4
    v_lshl_add_u32 v16, v5, 10, v3
    v_lshl_add_u32 v5, v4, 10, v3
    v_add_u32 v17, 0x8000, v5
    v_add_u32 v18, 0x10000, v5
    v_add_u32 v19, 0x18000, v5
    v_add_u32 v20, 0x20000, v5
    v_and_b32 v3, 2, v1
    v_or_b32 v3, s{T1}, v3
    v_xor_b32 v3, v2, v3
    v_lshlrev_b32 v7, 4, v3
    v_mul_u32_u24 v4, 3072, v6
    s_lshl_b32 s{T1}, s{HG}, 7
    v_add3_u32 v21, v4, v7, s{T1}
    """)
    if not WROT:
        for i in range(1, 6):
            a(f"v_add_u32 v{21+i}, {(i>>1)*1024 + (i&1)*32*3072}, v21")
    if ROT == 0: a(f"s_mov_b32 s{ROT1S}, 0")
    elif ROT == 1: a(f"s_lshl1_add_u32 s{ROT1S}, s{CG}, s{RT}")
    elif ROT == 3: a(f"s_add_u32 s{ROT1S}, s{CG}, s{RT}\ns_lshl_b32 s{ROT1S}, s{ROT1S}, 1")
    elif ROT == 2: a(f"s_add_u32 s{ROT1S}, s{CG}, s{RT}\ns_lshl_b32 s{ROT1S}, s{ROT1S}, 2")
    elif ROT == 6:
        a(f"s_lshl1_add_u32 s{T0}, s{CG}, s{RT}\ns_and_b32 s{T0}, s{T0}, 7\ns_min_u32 s{ROT1S}, s{T0}, 6")
    elif ROT == 5:
        a(f"s_add_u32 s{T0}, s{CG}, s{RT}\ns_mul_i32 s{T1}, s{T0}, 86\ns_lshr_b32 s{T1}, s{T1}, 8\ns_mul_i32 s{T1}, s{T1}, 3\ns_sub_u32 s{T0}, s{T0}, s{T1}\ns_mul_i32 s{ROT1S}, s{T0}, 3")
    a(f"""
    s_lshl_b32 s{LW1K}, s3, 10
    s_mov_b32 s{X+2}, 0x200000
    s_mov_b32 s{X+3}, 0x20000
    s_mov_b32 s{W+2}, 0x180000
    s_mov_b32 s{W+3}, 0x20000
    s_cmp_eq_u32 s{BR}, 0
    s_waitcnt lgkmcnt(0)
    s_mov_b32 s{X}, s4
    s_mov_b32 s{X+1}, s5
    s_cselect_b32 s{W}, s6, s12
    s_cselect_b32 s{W+1}, s7, s13
    """)
    vm = VM(a)
    stamp(a, 1)
    def issue(s):
        slot = slot_addr(s)
        if ROT == 6:
            if s == 0: a(f"s_mov_b32 s{T0}, {ROFF}")
            else:
                a(f"s_add_u32 s{T0}, s{ROT1S}, {s}")
                a(f"s_cmp_gt_u32 s{T0}, 7")
                a(f"s_cselect_b32 s{T1}, 7, 0")
                a(f"s_sub_u32 s{T0}, s{T0}, s{T1}")
                if ROFF:
                    a(f"s_add_u32 s{T0}, s{T0}, {ROFF}")
                    a(f"s_and_b32 s{T0}, s{T0}, 7")
        else:
            a(f"s_add_u32 s{T0}, s{ROT1S}, {s}")
            a(f"s_and_b32 s{T0}, s{T0}, 7")
        a(f"s_mul_i32 s{T1}, s{T0}, {64*3072}")
        a(f"s_lshl_b32 s{T0}, s{T0}, 7")
        l1 = a.label("ex"); l2 = a.label("ex")
        a("s_cmp_ge_u32 s3, 2")
        a(f"s_cbranch_scc1 {l1}")
        a(f"s_add_u32 m0, s{LW1K}, {slot + 4096*4}")
        a("s_nop 0")
        a(f"buffer_load_dwordx4 v20, s[{X}:{X+3}], s{T0} offen lds")
        a(f"s_branch {l2}")
        a(f"{l1}:")
        if s in (1, 3):
            l3 = a.label("ex")
            a("s_cmp_eq_u32 s3, 2")
            a(f"s_cbranch_scc1 {l3}")
            a("s_mov_b64 exec, 1")
            if s == 1: a(f"buffer_store_dword v30, v14, s[{WS}:{WS+3}], 0 offen sc1")
            else: a(f"buffer_atomic_add v15, v13, s[{DBG}:{DBG+3}], 0 offen sc1")
            a("s_mov_b64 exec, -1")
            a(f"s_branch {l2}")
            a(f"{l3}:")
        a(f"buffer_load_dword v31, v16, s[{X}:{X+3}], s{T0} offen")
        a(f"{l2}:")
        vm.op(f"st{s}")
        for kind, i in [("x", i) for i in range(4)] + [("w", i) for i in range(6)]:
            if kind == "x":
                a(f"s_add_u32 m0, s{LW1K}, {slot + 4096*i}")
                a("s_nop 0")
                a(f"buffer_load_dwordx4 v{16+i}, s[{X}:{X+3}], s{T0} offen lds")
            elif WROT:
                WM = [4, 5, 6, 7, 10, 11]
                if s == 0:
                    if i == 0:
                        a(f"s_and_b32 s{T2}, s{RT}, 7")
                        a(f"v_mov_b32 v12, v21")
                    else: a(f"s_add_u32 s{T2}, s{T2}, 1")
                    a(f"s_cmp_ge_u32 s{T2}, 6")
                    a(f"s_cselect_b32 s{T3}, 6, 0")
                    a(f"s_sub_u32 s{T2}, s{T2}, s{T3}")
                    a(f"s_lshl_b32 s{T3}, s{T2}, 12")
                    a(f"s_add_u32 s{WM[i]}, s{T3}, s{LW1K}")
                    a(f"s_lshr_b32 s{T3}, s{T2}, 1")
                    a(f"s_lshl_b32 s12, s{T3}, 10")
                    a(f"s_bitcmp1_b32 s{T2}, 0")
                    a(f"s_cselect_b32 s{T3}, {32*3072}, 0")
                    a(f"s_add_u32 s{T3}, s{T3}, s12")
                    a(f"v_add_u32 v{21+i}, s{T3}, v12")
                a(f"s_add_u32 m0, s{WM[i]}, {slot + XB}")
                a("s_nop 0")
                a(f"buffer_load_dwordx4 v{21+i}, s[{W}:{W+3}], s{T1} offen lds")
            else:
                a(f"s_add_u32 m0, s{LW1K}, {slot + XB + 4096*i}")
                a("s_nop 0")
                a(f"buffer_load_dwordx4 v{21+i}, s[{W}:{W+3}], s{T1} offen lds")
            vm.op(f"st{s}")
    def wo_issue(lst):
        for hi, i in lst:
            a(f"s_add_u32 s{T0}, s{ROT2S}, {i & 7}")
            a(f"s_and_b32 s{T0}, s{T0}, 7")
            a(f"s_xor_b32 s{T1}, s{HSEL}, {i & 8}")
            a(f"s_or_b32 s{T0}, s{T0}, s{T1}")
            a(f"s_add_u32 m0, s{LW1K}, {WB + hi*65536 + i*4096}")
            a(f"s_lshl_b32 s{T0}, s{T0}, 15")
            r = WOH if hi else WOL
            a(f"buffer_load_dwordx4 v27, s[{r}:{r+3}], s{T0} offen lds")
            vm.op("wo")
    for s in range(3):
        issue(s)
        stamp(a, 2 + s)
        if s == 0:
            p2_decode(a)
            srd(a, DBG, 20, 256)
            srd(a, WS, 22, 0x10000000)
            a(f"""
            s_bitcmp1_b32 s{RT2}, 0
            s_cselect_b32 s{WOH}, s14, s8
            s_cselect_b32 s{WOH+1}, s15, s9
            s_cselect_b32 s{WOL}, s8, s14
            s_cselect_b32 s{WOL+1}, s9, s15
            s_mov_b32 s{WOH+2}, 0x80000
            s_mov_b32 s{WOH+3}, 0x20000
            s_mov_b32 s{WOL+2}, 0x80000
            s_mov_b32 s{WOL+3}, 0x20000
            s_lshl_b32 s{T1}, s{CT}, 7
            v_lshl_add_u32 v27, v6, 10, v7
            v_add_u32 v27, s{T1}, v27
            s_lshl_b32 s{T0}, s{RT}, 8
            s_lshl2_add_u32 s{T0}, s{CG}, s{T0}
            s_add_u32 s{T0}, s{T0}, {F_OFF}
            v_mov_b32 v14, s{T0}
            v_mov_b32 v30, 0
            s_lshl_b32 s{T0}, s{RT}, {CSHIFT}
            s_add_u32 s{T0}, s{T0}, {CBASE}
            v_mov_b32 v13, s{T0}
            v_mov_b32 v15, 1
            s_lshr_b32 s{T0}, s{RT2}, 1
            s_lshl_b32 s{T1}, s{T0}, {CSHIFT}
            s_add_u32 s{T1}, s{T1}, {CBASE}
            v_mov_b32 v28, s{T1}             ; init counter of the producers
            """)
        if PRO == s + 1:
            vm.wait("st0"); stamp(a, 5); a("s_barrier")
    G4 = [(1, i) for i in range(8, 16)]
    G5 = [(1, i) for i in range(8)] + [(0, 14), (0, 15)]
    G6 = [(0, i) for i in range(3, 14)]
    G7 = [(0, i) for i in range(3)]
    GR = {0: {7: G4 + G5 + G6 + G7}, 1: {4: G4, 7: G5 + G6 + G7}, 2: {4: G4, 5: G5, 6: G6, 7: G7},
          3: {4: G4, 6: G5[:5], 7: G5[5:] + G6 + G7}}[WOG]
    for s in range(8):
        if s < 7: vm.wait(f"st{s+1}")
        if s in (0, 4, 6): stamp(a, {0: 6, 4: 7, 6: 8}[s], 0)
        stamp(a, 6 + s, 1)
        a("s_barrier")
        if s + 3 <= 7: issue(s + 3)
        if s == 7:
            a(f"""
            s_cmp_eq_u32 s3, 0
            s_cbranch_scc0 L_NOI0
            buffer_load_dword v30, v28, s[{DBG}:{DBG+3}], 0 offen sc1
            L_NOI0:
            """)
            vm.op("init")
        if s in GR: wo_issue(GR[s])
    a(f"""
    s_cmp_eq_u32 s3, 0
    s_cbranch_scc0 L_NOINIT
    s_mov_b32 s{T2}, {SPIN}
    s_waitcnt vmcnt({vm.count("init")})
    L_INIT:
    v_cmp_gt_u32 vcc, 16, v30
    s_sub_u32 s{T2}, s{T2}, 1
    s_cbranch_vccz L_INITOK
    s_cmp_eq_u32 s{T2}, 0
    s_cbranch_scc1 L_INITOK
    buffer_load_dword v30, v28, s[{DBG}:{DBG+3}], 0 offen sc1
    s_waitcnt vmcnt(0)
    s_branch L_INIT
    L_INITOK:
    L_NOINIT:
    """)
    p2_scalar(a)
    for x in p2_vector(): a(x)
    a(f"""
    v_mov_b32 v12, {CNT}
    v_mov_b32 v15, 1
    s_mov_b32 s{T2}, {SPIN}
    s_mov_b64 exec, 1
    s_waitcnt vmcnt(0)
    ds_add_u32 v12, v15 offset:4
    s_mov_b64 exec, -1
    ds_read_b32 v2, v12 offset:4
    s_branch K_P2
    """)
    a("K_CONS:")
    QA, KA, VA = 16, 48, 84
    FA = (120, 168)
    CCUR, CPREV, CPF, SEL, ONES = 216, 220, 224, 228, 232
    srd(a, WS, 22, 0x10000000)
    p2_decode(a)
    a(f"""
    s_lshl_b32 s{T0}, s{RT}, 8
    s_lshl2_add_u32 s{T0}, s{CG}, s{T0}
    s_add_u32 s{T0}, s{T0}, {F_OFF}
    v_mov_b32 v14, s{T0}
    v_mov_b32 v2, 0
    v_mov_b32 v12, {CNT}
    v_lshlrev_b32 v11, 2, v11
    v_add_u32 v11, {G_OFF}, v11      ; gate store offset (lanes 0 and 32; the others fall outside the descriptor)
    v_and_b32 v3, 31, v0
    v_lshl_or_b32 v11, v3, 28, v11
    v_lshrrev_b32 v3, 4, v3
    v_lshl_or_b32 v11, v3, 28, v11
    v_mov_b32 v3, 0
    ds_write_b64 v12, v[2:3]
    ds_write_b64 v12, v[2:3] offset:8
    """)
    if TOUCH:
        a(f"""
        s_cmp_eq_u32 s{CW}, 1
        s_cbranch_scc0 L_NOTOUCH
        s_mov_b64 exec, 1
        s_lshl_b32 s{T0}, s{RT2}, 16
        v_mov_b32 v254, s{T0}
        s_lshl_b32 s{T0}, s{RT2}, 17
        v_mov_b32 v253, s{T0}
        global_load_dword v255, v2, s[8:9]
        global_load_dword v255, v2, s[14:15]
        global_load_dword v255, v254, s[18:19]
        global_load_dword v255, v253, s[22:23]
        s_mov_b64 exec, -1
        L_NOTOUCH:
        """)
    a(f"""
    v_lshrrev_b32 v1, 4, v0          ; g
    v_and_b32 v2, 15, v0             ; n
    v_lshrrev_b32 v3, 1, v2
    v_xor_b32 v3, v1, v3
    v_lshlrev_b32 v3, 4, v3
    v_lshl_add_u32 v7, v2, 7, v3
    v_xor_b32 v8, 64, v7
    v_lshrrev_b32 v3, 2, v2          ; r
    v_lshl_add_u32 v9, v1, 3, v3
    v_lshlrev_b32 v9, 7, v9
    v_lshrrev_b32 v3, 1, v3
    v_and_b32 v15, 1, v1
    v_lshl_or_b32 v3, v15, 1, v3     ; f
    v_xor_b32 v3, s{CW}, v3
    v_lshl_add_u32 v9, v3, 5, v9
    v_and_b32 v3, 3, v2
    v_lshl_add_u32 v9, v3, 3, v9
    v_add_u32 v9, {XB}, v9           ; W base
    v_add_u32 v4, {slot_addr(0)}, v7
    v_add_u32 v5, {slot_addr(0)}, v8
    v_add_u32 v6, {slot_addr(0)}, v9
    s_lshl2_add_u32 s{T0}, s{HG}, s{CW}  ; h
    s_lshl_b32 s{T1}, s{RT}, 18
    s_lshl_b32 s{T2}, s{BR}, 14
    s_add_u32 s{T1}, s{T1}, s{T2}
    s_lshr_b32 s{T2}, s{T0}, 1
    s_lshl_b32 s{T2}, s{T2}, 10
    s_add_u32 s{T1}, s{T1}, s{T2}
    s_and_b32 s{T2}, s{T0}, 1
    s_lshl_b32 s{T2}, s{T2}, 9
    s_add_u32 s{T1}, s{T1}, s{T2}
    v_and_b32 v3, 1, v1
    v_lshlrev_b32 v13, 15, v3
    v_lshrrev_b32 v3, 1, v1
    v_lshl_add_u32 v13, v3, 8, v13
    v_lshl_add_u32 v13, v2, 4, v13
    v_add_u32 v13, s{T1}, v13        ; o store offset
    s_mov_b32 s{T2}, {NEG}
    v_lshlrev_b32 v3, 2, v1
    v_sub_u32 v3, v2, v3
    v_mov_b32 v15, s{T2}
    v_mov_b32 v18, 0x0c0c0c0c
    """)
    for j in range(4): a(f"v_mov_b32 v{SEL+j}, v18")
    selv = [0x0c0c0100, 0x01000c0c, 0x0c0c0302, 0x03020c0c]
    for i in range(4):
        a(f"""
        v_subrev_u32 v16, {i}, v3
        v_and_b32 v17, 1, v16
        v_cmp_eq_u32 s[40:41], 0, v17
        v_cmp_le_i32 s[42:43], 0, v16
        v_mov_b32 v18, {selv[i]}
        s_nop 0
        s_and_b64 s[44:45], s[40:41], s[42:43]
        s_andn2_b64 s[46:47], s[40:41], s[42:43]
        v_cndmask_b32 v{CCUR+i}, v15, 0, s[44:45]
        v_cndmask_b32 v{CPREV+i}, v15, 0, s[46:47]
        v_cndmask_b32 v{SEL+(i>>1)}, v{SEL+(i>>1)}, v18, s[46:47]
        v_cndmask_b32 v{SEL+2+(i>>1)}, v{SEL+2+(i>>1)}, v18, s[44:45]
        """)
    a(f"s_cmp_eq_u32 s{RT}, 0\ns_cselect_b64 s[44:45], -1, 0")
    for i in range(4):
        a(f"v_cndmask_b32 v{CPF+i}, v{CPREV+i}, v15, s[44:45]")
        a(f"v_mov_b32 v{ONES+i}, 0x3f803f80")
    p2_scalar(a)
    a(f"s_mov_b32 s40, {65536}\ns_mov_b32 s41, {2*65536}\ns_mov_b32 s42, {3*65536}\ns_mov_b32 s43, {CSC}\ns_mov_b32 s44, {CSC}\ns_mov_b32 s45, {CSC}")
    a("s_waitcnt lgkmcnt(0)")
    def reads(sub, fs):
        base = FA[fs]
        r = []
        for sec in range(3):
            for half in range(2):
                r.append(f"ds_read_b64_tr_b16 {vr(base+36+4*sec+2*half, 2)}, v6 offset:{sec*8192 + sub*4096 + half*512}")
        for T in range(9):
            r.append(f"ds_read_b128 {vr(base+4*T, 4)}, v{4+sub} offset:{T*2048}")
        return r
    def mfmas(fs, first=False):
        base = FA[fs]
        m = []
        Xr = lambda T: vr(base + 4*T, 4)
        Wr = lambda sec: vr(base + 36 + 4*sec, 4)
        for T in range(9):
            d = vr(KA + 4*T, 4); m.append(f"v_mfma_f32_16x16x32_bf16 {d}, {Wr(1)}, {Xr(T)}, {0 if first else d}")
            if T >= 1:
                d = vr(QA + 4*(T-1), 4); m.append(f"v_mfma_f32_16x16x32_bf16 {d}, {Wr(0)}, {Xr(T)}, {0 if first else d}")
            d = vr(VA + 4*T, 4); m.append(f"v_mfma_f32_16x16x32_bf16 {d}, {Xr(T)}, {Wr(2)}, {0 if first else d}")
        if MORD == 1:
            key = lambda x: int(x.split("v[")[1].split(":")[0])
            m = sorted(m, key=lambda x: ({0: 1, 1: 0, 2: 2}[(key(x) >= KA) + (key(x) >= VA)], key(x)))
        return m
    def interleave(m, r, per=1):
        r = list(r); out = []
        for x in m:
            out.append(x)
            for _ in range(per):
                if r: out.append(r.pop(0))
        out += r
        for x in sched.pad(out): a(x)
    def addr_static(s):
        return [f"v_add_u32 v4, {slot_addr(s)}, v7", f"v_add_u32 v5, {slot_addr(s)}, v8", f"v_add_u32 v6, {slot_addr(s)}, v9"]
    gate = ["v_mov_b32 v253, 0", "v_mov_b32 v254, 0"]
    for j in range(8):
        gate += [f"v_lshlrev_b32 v1, 16, v{236+j}", f"v_and_b32 v2, 0xffff0000, v{236+j}",
                 f"v_lshlrev_b32 v3, 16, v{244+j}", f"v_and_b32 v15, 0xffff0000, v{244+j}",
                 "v_mul_f32 v1, v1, v3", "v_mul_f32 v2, v2, v15", "v_cvt_pk_bf16_f32 v1, v1, v2",
                 "v_lshlrev_b32 v3, 16, v1", "v_and_b32 v15, 0xffff0000, v1",
                 "v_add_f32 v253, v253, v3", "v_add_f32 v254, v254, v15"]
    gate += ["v_add_f32 v10, v253, v254"]
    for rot in (8, 4, 2, 1): gate.append(f"v_add_f32_dpp v10, v10, v10 row_ror:{rot} row_mask:0xf bank_mask:0xf")
    gate += ["v_mov_b32 v1, v10", "v_permlane16_swap_b32 v10, v1", "v_add_f32 v10, v10, v1",
             "v_cvt_pk_bf16_f32 v10, v10, v10", "v_lshlrev_b32 v10, 16, v10", "v_mul_f32 v10, 0xbfb8aa3b, v10",
             "v_exp_f32 v10, v10", "v_add_f32 v10, 1.0, v10", "v_rcp_f32 v10, v10",
             "v_cvt_pk_bf16_f32 v10, v10, v10", "v_lshlrev_b32 v10, 16, v10"]
    stamp(a, 1)
    a("s_barrier")
    stamp(a, 2)
    for x in reads(0, 0): a(x)
    a("s_waitcnt lgkmcnt(0)")
    interleave(mfmas(0, True), reads(1, 1) + addr_static(1))
    a("s_waitcnt lgkmcnt(0) vmcnt(0)")
    interleave(mfmas(1), gate + p2_vector(), 2)
    a("s_barrier")
    stamp(a, 3)
    for x in reads(0, 0): a(x)
    a("s_waitcnt lgkmcnt(0)")
    if ROLL:
        a(f"s_mov_b32 s46, {slot_addr(1)}\ns_mov_b32 s47, 6")
        a("L_MAIN:")
        upd = [f"s_sub_u32 s46, s46, {SLOT}", f"s_cselect_b32 s46, {2*SLOT}, s46", "s_sub_u32 s47, s47, 1",
               "v_add_u32 v4, s46, v7", "v_add_u32 v5, s46, v8", "v_add_u32 v6, s46, v9"]
        interleave(mfmas(0), reads(1, 1) + upd)
        a("s_waitcnt lgkmcnt(0)")
        a("s_barrier")
        interleave(mfmas(1), reads(0, 0) + ["s_cmp_lg_u32 s47, 0"])
        a("s_waitcnt lgkmcnt(0)")
        a("s_cbranch_scc1 L_MAIN")
    else:
        for s in range(1, 7):
            interleave(mfmas(0), reads(1, 1) + addr_static(s + 1))
            a("s_waitcnt lgkmcnt(0)")
            a("s_barrier")
            if s in (1, 4, 6): stamp(a, {1: 4, 4: 5, 6: 6}[s], 0)
            stamp(a, 3 + s, 1)
            interleave(mfmas(1), reads(0, 0))
            a("s_waitcnt lgkmcnt(0)")
    interleave(mfmas(0), reads(1, 1))
    a("s_waitcnt lgkmcnt(0)")
    a("s_barrier")
    stamp(a, 7, 0); stamp(a, 10, 1)
    if PRIO: a("s_setprio 2")
    QP, KP, VP = 120, 136, 154
    ins = list(mfmas(1))
    for T in range(9):
        ins.append(f"v_cvt_pk_bf16_f32 v{KP+2*T}, v{KA+4*T}, v{KA+4*T+1}")
        ins.append(f"v_cvt_pk_bf16_f32 v{KP+2*T+1}, v{KA+4*T+2}, v{KA+4*T+3}")
        if T >= 1:
            ins.append(f"v_cvt_pk_bf16_f32 v{QP+2*(T-1)}, v{QA+4*(T-1)}, v{QA+4*(T-1)+1}")
            ins.append(f"v_cvt_pk_bf16_f32 v{QP+2*(T-1)+1}, v{QA+4*(T-1)+2}, v{QA+4*(T-1)+3}")
        ins.append(f"v_cvt_pk_bf16_f32 v{VP+2*T}, v{VA+4*T}, v{VA+4*T+1}")
        ins.append(f"v_cvt_pk_bf16_f32 v{VP+2*T+1}, v{VA+4*T+2}, v{VA+4*T+3}")
    SCU = lambda T: QA + 4*(T-1)
    SPR = lambda T: KA + 4*(T-1)
    L = lambda T: VA + 4*(T-1)
    M = lambda T: VA + 4*(T-1) + 2
    R = lambda T: VA + 4*(T-1) + 2
    SUM = lambda T: FA[1] + 4*T
    for T in range(1, 9):
        q = vr(QP + 2*(T-1), 2)
        ins.append(f"v_mfma_f32_16x16x16_bf16 {vr(SCU(T),4)}, {vr(KP+2*T,2)}, {q}, {vr(CCUR,4)}")
        ins.append(f"v_mfma_f32_16x16x16_bf16 {vr(SPR(T),4)}, {vr(KP+2*(T-1),2)}, {q}, {vr(CPF if T == 1 else CPREV,4)}")
        c, p, l = SCU(T), SPR(T), L(T)
        ins.append(f"v_max3_f32 v{l}, v{c}, v{c+1}, v{p}")
        ins.append(f"v_max3_f32 v{l+1}, v{c+2}, v{c+3}, v{p+2}")
        ins.append(f"v_max_f32 v{l}, v{l}, v{p+1}")
        ins.append(f"v_max_f32 v{l+1}, v{l+1}, v{p+3}")
        ins.append(f"v_max_f32 v{M(T)}, v{l}, v{l+1}")
    for b0 in (1, 5):
        p, q, r, s = M(b0), M(b0+1), M(b0+2), M(b0+3)
        ins += [f"v_permlane32_swap_b32 v{p}, v{q}", f"v_permlane32_swap_b32 v{r}, v{s}",
                f"v_max_f32 v{p}, v{p}, v{q}", f"v_max_f32 v{r}, v{r}, v{s}",
                f"v_permlane16_swap_b32 v{p}, v{r}", f"v_max_f32 v{p}, v{p}, v{r}",
                f"v_mul_f32 v{p}, s43, v{p}", f"v_mov_b32 v{r}, v{p}", f"v_permlane16_swap_b32 v{p}, v{r}",
                f"v_mov_b32 v{q}, v{p}", f"v_mov_b32 v{s}, v{r}",
                f"v_permlane32_swap_b32 v{p}, v{q}", f"v_permlane32_swap_b32 v{r}, v{s}"]
        for T in range(b0, b0 + 4):
            l = L(T); pr = SCU(T); o = SPR(T)
            if PK:
                ins.append(f"v_pk_fma_f32 {vr(l,2)}, {vr(l,2)}, s[44:45], {vr(M(T),2)} op_sel_hi:[1,0,0] neg_lo:[0,0,1] neg_hi:[0,0,1]")
            else:
                ins.append(f"v_fma_f32 v{l}, v{l}, s43, -v{M(T)}")
                ins.append(f"v_fma_f32 v{l+1}, v{l+1}, s43, -v{M(T)}")
            ins.append(f"v_exp_f32 v{l}, v{l}")
            ins.append(f"v_exp_f32 v{l+1}, v{l+1}")
            ins.append(f"v_cvt_pk_bf16_f32 v{l}, v{l}, v{l+1}")
            for j in range(4): ins.append(f"v_perm_b32 v{pr+j}, v{l}, v{l}, v{SEL+j}")
            ins.append(f"v_mfma_f32_16x16x32_bf16 {vr(SUM(T),4)}, {vr(ONES,4)}, {vr(pr,4)}, 0")
            ins.append(f"v_mfma_f32_16x16x32_bf16 {vr(o,4)}, {vr(VP+2*(T-1),4)}, {vr(pr,4)}, 0")
            ins.append(f"v_rcp_f32 v{R(T)}, v{SUM(T)}")
            if PK:
                ins.append(f"v_pk_mul_f32 {vr(o,2)}, {vr(o,2)}, {vr(R(T),2)} op_sel_hi:[1,0]")
                ins.append(f"v_pk_mul_f32 {vr(o+2,2)}, {vr(o+2,2)}, {vr(R(T),2)} op_sel_hi:[1,0]")
            else:
                for i in range(4): ins.append(f"v_mul_f32 v{o+i}, v{o+i}, v{R(T)}")
        for i in ((b0-1)//2, (b0-1)//2 + 1):
            ob = SCU(2*i+1)
            o0, o1 = SPR(2*i+1), SPR(2*i+2)
            ins += [f"v_cvt_pk_bf16_f32 v{ob}, v{o0}, v{o0+1}", f"v_cvt_pk_bf16_f32 v{ob+1}, v{o0+2}, v{o0+3}",
                    f"v_cvt_pk_bf16_f32 v{ob+2}, v{o1}, v{o1+1}", f"v_cvt_pk_bf16_f32 v{ob+3}, v{o1+2}, v{o1+3}",
                    f"v_permlane16_swap_b32 v{ob}, v{ob+2}", f"v_permlane16_swap_b32 v{ob+1}, v{ob+3}",
                    f"buffer_store_dwordx4 {vr(ob,4)}, v13, s[{WS}:{WS+3}], {'0' if i == 0 else 's%d' % (39+i)} offen sc1"]
    ins.insert(len(ins) - 1, f"buffer_store_dword v10, v11, s[{WS}:{WS+3}], 0 offen sc1")
    II = [sched.I(x) for x in ins]
    st = [x for x in II if x.kind == "store"]
    for k, x in enumerate(st): x.tail = TAILB * max(0, 2 - k)
    for x in II:
        if x.op.startswith("v_permlane"): x.cost = 8
        elif x.kind == "valu" and x.op in ("v_cvt_pk_bf16_f32", "v_max3_f32", "v_fma_f32", "v_perm_b32", "v_pk_fma_f32", "v_pk_mul_f32"): x.cost = 5
    lines, est = sched.schedule(II)
    lines2 = sched.pad(lines)
    assert lines2 == lines
    print(f"attention region est {est} cycles, {len(lines)} lines, nops {sum(l.startswith('s_nop') for l in lines)}", file=sys.stderr)
    for x in lines: a(x)
    stamp(a, 8, 0); stamp(a, 12, 1)
    a(f"""
    ds_read_b32 v2, v12 offset:4
    v_mov_b32 v15, 1
    s_mov_b32 s{T2}, {SPIN}
    s_mov_b64 exec, 1
    s_waitcnt vmcnt(0)
    ds_add_rtn_u32 v3, v12, v15
    s_waitcnt lgkmcnt(0)
    v_cmp_eq_u32 vcc, 3, v3
    s_cbranch_vccz L_NOFLAG0
    buffer_store_dword v15, v14, s[{WS}:{WS+3}], 0 offen sc1
    L_NOFLAG0:
    s_mov_b64 exec, -1
    {"s_setprio 0" if PRIO else ""}
    """)
    stamp(a, 9, 0)
    a("K_P2:")
    a(f"""
    L_WOW:
    s_waitcnt lgkmcnt(0)
    v_cmp_eq_u32 vcc, 4, v2
    s_cbranch_vccnz L_WOK
    ds_read_b32 v2, v12 offset:4
    s_branch L_WOW
    L_WOK:
    """)
    stamp(a, 10, 0)
    poll = f"buffer_load_dword v11, v{VF}, s[{WS}:{WS+3}], 0 offen sc1"
    def lead_poll():
        l = a.label("np")
        a(f"s_cmp_eq_u32 s{RQ}, 0\ns_cbranch_scc0 {l}\n{poll}\n{l}:")
    def refresh(issue=True, wait=0, follower=True):
        lf, le = a.label("foll"), a.label("refd")
        a(f"s_cmp_eq_u32 s{RQ}, 0")
        a(f"s_cbranch_scc0 {lf}")
        if issue: a(poll)
        a(f"""
        s_sub_u32 s{T2}, s{T2}, 1
        s_cselect_b32 s{RM}, -1, 0
        {"s_waitcnt vmcnt(%d)" % wait if wait is not None else ""}
        v_cmp_eq_u32 vcc, 1, v11
        s_nop 0
        s_or_b32 s{RM}, s{RM}, vcc_lo
        v_mov_b32 v2, s{RM}
        s_mov_b64 exec, 1
        ds_or_b32 v12, v2 offset:8
        s_mov_b64 exec, -1
        """)
        if follower:
            a(f"""
            s_branch {le}
            {lf}:
            ds_read_b32 v2, v12 offset:8
            s_waitcnt lgkmcnt(0)
            v_readfirstlane_b32 s{RM}, v2
            {le}:
            """)
        else: a(f"{lf}:")
    lead_poll()
    if PDEPTH > 1:
        h = len(pre_all) // PDEPTH
        for k in range(PDEPTH):
            for x in pre_all[k*h:(k+1)*h if k < PDEPTH - 1 else None]: a(x)
            if k < PDEPTH - 1: lead_poll()
    else:
        for x in pre_all: a(x)
    refresh(issue=False, wait=PDEPTH - 1)
    a(f"""
    L_W1:
    s_and_b32 s{T0}, s{RM}, s{MA}
    s_cmp_eq_u32 s{T0}, s{MA}
    s_cbranch_scc1 L_VA
    s_and_b32 s{T0}, s{RM}, s{MB}
    s_cmp_eq_u32 s{T0}, s{MB}
    s_cbranch_scc1 L_VB
    """)
    refresh(wait=PDEPTH - 1)
    a("s_branch L_W1")
    for var, order, m2 in (("A", list(range(16)), MB), ("B", list(range(8, 16)) + list(range(8)), MA)):
        a(f"L_V{var}:")
        stamp(a, 11, 0)
        vm = VM(a)
        lgk = []
        streamed = [i for i in order if i not in PRESET]
        sbuf = {i: WF[n & 1] for n, i in enumerate(streamed)}
        nread = [0]
        def sread():
            if nread[0] < len(streamed):
                i = streamed[nread[0]]; nread[0] += 1
                for x in wreads(i, sbuf[i]): a(x); lgk.append(i)
        def oload(n):
            i = order[n]
            if n == 8:
                lw, lo = a.label("w2"), a.label("w2ok")
                a(f"{lw}:")
                a(f"s_and_b32 s{T0}, s{RM}, s{m2}")
                a(f"s_cmp_eq_u32 s{T0}, s{m2}")
                a(f"s_cbranch_scc1 {lo}")
                refresh()
                a(f"s_branch {lw}")
                a(f"{lo}:")
                stamp(a, 12, 0)
            a(f"buffer_load_dwordx4 {vr(OF+4*(n % NOB),4)}, v{VO}, s[{WS}:{WS+3}], s{4+i} offen sc1"); vm.op(f"o{n}")
        for n in range(NOB): oload(n)
        if APOLL: lead_poll()
        sread(); sread()
        for n in range(16):
            i = order[n]
            if i in sbuf or n == 0:
                last = max([k for k, x in enumerate(lgk) if x == i], default=-1)
                a(f"s_waitcnt lgkmcnt({min(15, len(lgk) - 1 - last)})")
            vm.wait(f"o{n}")
            wb = sbuf[i] if i in sbuf else WP + 16*PRESET.index(i)
            for j in range(4):
                d = vr(ACC + 4*j, 4)
                a(f"v_mfma_f32_16x16x32_bf16 {d}, {vr(wb+4*j,4)}, {vr(OF+4*(n % NOB),4)}, {0 if n == 0 else d}")
            if APOLL and n == NOB - 1: refresh(issue=False, wait=None, follower=False)
            if i in sbuf: sread()
            if n + NOB < 16: oload(n + NOB)
            if n + NOB == 16:
                a(f"buffer_load_dword v10, v{VG}, s[{WS}:{WS+3}], 0 offen sc1"); vm.op("g")
        if var == "A": a("s_branch L_VEND")
    a("L_VEND:")
    stamp(a, 13, 0)
    a(f"""
    s_waitcnt vmcnt(0)
    s_cmp_eq_u32 s{GSEL}, 0
    s_cbranch_scc0 K2_NOG
    ds_write_b32 v{VGX}, v10
    K2_NOG:
    s_nop 1
    s_cmp_eq_u32 s{B2}, 0
    s_cbranch_scc0 K2_B1
    """)
    for b in range(2):
        if b == 1: a("K2_B1:")
        give = ACC + 8*(1-b); keep = ACC + 8*b
        a("s_nop 1")
        a(f"ds_write_b128 v{VXW}, {vr(give,4)}")
        a(f"ds_write_b128 v{VXW}, {vr(give+4,4)} offset:1024")
        a("s_waitcnt lgkmcnt(0)")
        a("s_barrier")
        a(f"ds_read_b32 v10, v{VGX}")
        a(f"ds_read_b128 v[48:51], v{VXR}")
        a(f"ds_read_b128 v[52:55], v{VXR} offset:1024")
        a("s_waitcnt lgkmcnt(2)")
        a("v_sub_f32 v11, 1.0, v10")
        a("v_cvt_pk_bf16_f32 v11, v11, v11")
        a("v_lshlrev_b32 v11, 16, v11")
        ck, cr = (10, 11) if b == 0 else (11, 10)
        for i in range(8): a(f"v_mul_f32 v{keep+i}, v{keep+i}, v{ck}")
        a("s_waitcnt lgkmcnt(0)")
        for i in range(8): a(f"v_fmac_f32 v{keep+i}, v{48+i}, v{cr}")
        for i in range(4): a(f"v_cvt_pk_bf16_f32 v{56+i}, v{keep+2*i}, v{keep+2*i+1}")
        a("s_nop 1")
        a("v_permlane16_swap_b32 v56, v58")
        a("v_permlane16_swap_b32 v57, v59")
        a(f"buffer_store_dwordx4 v[56:59], v{VOUT}, s[{G}:{G+3}], 0 offen {OUTMOD}")
        if b == 0: a("s_branch K2_FIN")
    a("K2_FIN:")
    stamp(a, 14)
    if STAMPS:
        a("s_waitcnt vmcnt(0)")
        stamp(a, 15)
        store_stamps(a)
    a("K_END:")
    a("s_endpgm")
    if CODEPF: a(".fill 512, 4, 0xbf800000")

a = Asm()
a.lines.append(HEADER.rstrip())
a.lines.append(f"; @launch grid=(256,1,1) block=(512,1,1) lds={LDS_BYTES}")
a('.amdgcn_target "amdgcn-amd-amdhsa--gfx950"')
a(".text")
gen(a, NAME + "_kernel")
a('.section .rodata,"a"')
a(".p2align 6")
a(descriptor(NAME + "_kernel", 256))
open(OUT, "w").write(a.text())
```
